```python
import torch

def _softmax(x, axis=-1):
    return torch.softmax(x, dim=axis)
def _gelu(x):
    return torch.nn.functional.gelu(x, approximate="tanh")
def _silu(x):
    return torch.nn.functional.silu(x)
def _sigmoid(x):
    return torch.sigmoid(x)
def _layernorm(x, axis=-1, eps=1e-5):
    m = x.mean(dim=axis, keepdim=True)
    v = x.var(dim=axis, keepdim=True, unbiased=False)
    return (x - m) / torch.sqrt(v + eps)
def _scatter_add(tgt, idx, src, axis=0):
    return tgt.clone().index_add_(axis, idx, src)
def _segment_sum(src, seg, n):
    out = torch.zeros((n,) + src.shape[1:], dtype=src.dtype)
    return out.index_add_(0, seg, src)
def _pad(x, pw):
    flat = tuple(v for pair in reversed(pw) for v in pair)
    return torch.nn.functional.pad(x, flat)

kernel_name = 'gated_mix__compressed_kv_cla__ssm_conv_h3__prompt'

def setup_inputs():

    _w = (lambda a: (lambda t: t.to(torch.bfloat16) if t.is_floating_point() else t)(torch.as_tensor(a)))
    def _A_setup():
        B, H, Sq, Sk, D, M = 1, 32, 2048, 2048, 128, 1024
        Dc = 4 * D
        return {
            "x": _w((lambda *s: torch.randn(*s, dtype=torch.bfloat16) * 0.05)(B, Sq, M)),
            "c_kv": _w((lambda *s: torch.randn(*s, dtype=torch.bfloat16) * 0.8)(B, Sk, Dc)),
            "w_q": _w((lambda *s: torch.randn(*s, dtype=torch.bfloat16) * 6.4)(M, H, D) * (M ** -0.5)),
            "w_uk": _w((lambda *s: torch.randn(*s, dtype=torch.bfloat16) * 6.4)(Dc, H, D) * (Dc ** -0.5)),
            "w_uv": _w((lambda *s: torch.randn(*s, dtype=torch.bfloat16) * 0.8)(Dc, H, D) * (Dc ** -0.5)),
            "w_o": _w((lambda *s: torch.randn(*s, dtype=torch.bfloat16) * 0.8)(H, D, M) * ((H * D) ** -0.5)),
        }
    _A_in = _A_setup()

    def _B_setup():
        B, S, D = 1, 2048, 1024
        ks = 4
        return {
            "q": _w((lambda *s: torch.randn(*s, dtype=torch.bfloat16) * 0.05)(B, S, D)),
            "k": _w((lambda *s: torch.randn(*s, dtype=torch.bfloat16) * 0.8)(B, S, D)),
            "v": _w((lambda *s: torch.randn(*s, dtype=torch.bfloat16) * 0.8)(B, S, D)),
            "shift_k": _w((lambda *s: torch.randn(*s, dtype=torch.bfloat16) * 0.8)(D, ks) * 0.5),
            "ssm_k": _w((lambda *s: torch.randn(*s, dtype=torch.bfloat16) * 1.6)(D, S) * (1.0 / S ** 0.5)),
            "ssm_D": _w((lambda *s: torch.randn(*s, dtype=torch.bfloat16) * 0.8)(D)),
        }
    _B_in = _B_setup()

    return {
        "A_x": _A_in["x"],
        "A_c_kv": _A_in["c_kv"],
        "A_w_q": _A_in["w_q"],
        "A_w_uk": _A_in["w_uk"],
        "A_w_uv": _A_in["w_uv"],
        "A_w_o": _A_in["w_o"],
        "B_q": _B_in["q"],
        "B_k": _B_in["k"],
        "B_v": _B_in["v"],
        "B_shift_k": _B_in["shift_k"],
        "B_ssm_k": _B_in["ssm_k"],
        "B_ssm_D": _B_in["ssm_D"],
        "gate_w": _w((lambda *s: torch.randn(*s, dtype=torch.bfloat16) * 0.05)(1024) * 16.0),
    }

def reference(A_x, A_c_kv, A_w_q, A_w_uk, A_w_uv, A_w_o, B_q, B_k, B_v, B_shift_k, B_ssm_k, B_ssm_D, gate_w):
    def _A_ref(x, c_kv, w_q, w_uk, w_uv, w_o):
        B, Sq, M = x.shape[0], x.shape[1], x.shape[2]
        Sk = c_kv.shape[1]
        H, D = w_q.shape[1], w_q.shape[2]
        q = torch.einsum("bqm,mhd->bhqd", x, w_q)
        k = torch.einsum("bkc,chd->bhkd", c_kv, w_uk)
        v = torch.einsum("bkc,chd->bhkd", c_kv, w_uv)
        scores = torch.einsum("bhqd,bhkd->bhqk", q, k) * (D ** -0.5)
        off = Sk - Sq
        qi = torch.arange(Sq)[:, None]
        kj = torch.arange(Sk)[None, :]
        cmask = kj <= (qi + off)
        scores = torch.where(cmask[None, None], scores, -1e9)
        p = _softmax(scores, axis=-1)
        ctx = torch.einsum("bhqk,bhkd->bhqd", p, v)
        return torch.einsum("bhqd,hdm->bqm", ctx, w_o)

    def _B_ref(q, k, v, shift_k, ssm_k, ssm_D):
        B, S, D = q.shape
        ks = shift_k.shape[-1]
        k_pad = _pad(k, ((0, 0), (ks - 1, 0), (0, 0)))
        k_shift = torch.zeros_like(k)
        for t in range(ks):
            k_shift = k_shift + k_pad[:, t:t + S, :] * shift_k[:, ks - 1 - t][None, None, :]
        kv = k_shift * v
        L = 2 * S
        kv_pad = _pad(kv, ((0, 0), (0, S), (0, 0)))
        kf_pad = _pad(ssm_k, ((0, 0), (0, S)))
        kv_f = (lambda x, axes=(-2,-1): torch.fft.rfft2(x.float(), dim=axes))(kv_pad[:, None, :, :], axes=(1, 2))
        kf_f = (lambda x, axes=(-2,-1): torch.fft.rfft2(x.float(), dim=axes))(kf_pad[:, None, :], axes=(1, 2))
        kf_f = (lambda x, *d: x.permute(*d))(kf_f, 1, 2, 0)
        y_f = kv_f * kf_f[None, :, :, :]
        y = (lambda x, s, axes=(-2,-1): torch.fft.irfft2(x, s=s, dim=axes).to(torch.bfloat16))(y_f, (1, L), axes=(1, 2))[:, 0, :S, :]
        y = y + kv * ssm_D[None, None, :]
        return q * y

    x = A_x
    g = _sigmoid((x * gate_w).sum(-1, keepdims=True))
    a = _A_ref(x, A_c_kv, A_w_q, A_w_uk, A_w_uv, A_w_o)
    b = _B_ref(x, B_k, B_v, B_shift_k, B_ssm_k, B_ssm_D)
    return g * a + (1 - g) * b
```

```python
import re

REG_RE = re.compile(r'^(-|abs\()?([vas])(\d+)\)?$')
RNG_RE = re.compile(r'^(-)?([vas])\[(\d+):(\d+)\]$')

def regs_of(op):
    op = op.strip()
    m = RNG_RE.match(op)
    if m: return [f"{m.group(2)}{i}" for i in range(int(m.group(3)), int(m.group(4)) + 1)]
    m = REG_RE.match(op)
    if m: return [f"{m.group(2)}{m.group(3)}"]
    if op in ('vcc', 'exec', 'm0', 'scc'): return [op]
    if op in ('vcc_lo', 'vcc_hi'): return ['vcc']
    if op in ('exec_lo', 'exec_hi'): return ['exec']
    return []

TRANS = ('v_exp_f32', 'v_log_f32', 'v_rcp_f32', 'v_rsq_f32', 'v_sqrt_f32')

class I:
    def __init__(self, text, note=None):
        self.text = text.strip()
        self.note = note
        t = self.text.split(';')[0].strip()
        parts = t.split(None, 1)
        self.op = parts[0]
        rest = parts[1] if len(parts) > 1 else ''
        ops = [o.strip() for o in rest.split(',')] if rest else []
        mods = []
        if ops:
            last = ops[-1].split()
            ops[-1] = last[0]; mods = last[1:]
        self.ops, self.mods = ops, mods
        op = self.op
        R = lambda lst: [r for o in lst for r in regs_of(o)]
        self.reads, self.writes = [], []
        self.srcc = []
        if op.startswith('v_mfma'):
            self.kind = 'mfma'; self.writes = R(ops[:1]); self.reads = R(ops[1:]); self.srcc = R(ops[3:4]); self.srcab = R(ops[1:3])
            self.passes = 4 if '16x16x32' in op else 8
        elif op.startswith('ds_read'):
            self.kind = 'dsr'; self.writes = R(ops[:1]); self.reads = R(ops[1:])
        elif op.startswith('ds_write'):
            self.kind = 'dsw'; self.reads = R(ops)
        elif op.startswith('ds_bpermute') or op.startswith('ds_swizzle'):
            self.kind = 'dsr'; self.writes = R(ops[:1]); self.reads = R(ops[1:])
        elif op.startswith('buffer_load') and 'lds' in mods:
            self.kind = 'dma'; self.reads = R(ops) + ['m0']
        elif op.startswith('buffer_load') or op.startswith('global_load'):
            self.kind = 'vld'; self.writes = R(ops[:1]); self.reads = R(ops[1:])
        elif op.startswith('buffer_store'):
            self.kind = 'vst'; self.reads = R(ops); self.data = R(ops[:1])
        elif op.startswith('global_store'):
            self.kind = 'vst'; self.reads = R(ops); self.data = R(ops[1:2])
        elif op.startswith('buffer_atomic') or op.startswith('global_atomic'):
            self.kind = 'vst'; self.reads = R(ops); self.data = []
            assert 'sc0' not in mods
        elif op.startswith('buffer_inv') or op.startswith('buffer_wbl2'):
            self.kind = 'vst'; self.data = []
        elif op.startswith('s_load') or op in ('s_memtime', 's_memrealtime'):
            self.kind = 'smem'; self.writes = R(ops[:1]); self.reads = R(ops[1:])
        elif op == 'HINT': self.kind = 'hint'; self.reads = R(ops)
        elif op == 's_waitcnt': self.kind = 'wait'
        elif op == 's_nop': self.kind = 'nop'
        elif op in ('s_barrier', 's_endpgm', 's_setprio', 's_sleep'): self.kind = 'misc'
        elif op.startswith('s_cbranch') or op == 's_branch':
            self.kind = 'branch'
            if 'vcc' in op: self.reads = ['vcc']
        elif op.startswith(('s_cmp', 's_bitcmp')):
            self.kind = 'salu'; self.reads = R(ops)
        elif op.startswith('s_'):
            self.kind = 'salu'; self.writes = R(ops[:1]); self.reads = R(ops[1:])
            if 'saveexec' in op: self.writes.append('exec')
            if op in ('s_addk_i32',): self.reads += self.writes
        elif op.startswith('v_'):
            self.kind = 'valu'
            if op.startswith('v_permlane') and 'swap' in op:
                self.writes = R(ops[:2]); self.reads = R(ops[:2])
            elif op.startswith(('v_add_co', 'v_addc_co', 'v_sub_co')):
                self.writes = R(ops[:2]); self.reads = R(ops[2:])
            else:
                self.writes = R(ops[:1]); self.reads = R(ops[1:])
                if op.startswith(('v_fmac', 'v_writelane')): self.reads += self.writes
                if any(m.startswith(('row_', 'quad_perm', 'wave_', 'dst_sel')) for m in mods): self.reads += self.writes
        else:
            raise ValueError("unknown instruction: " + text)
        m = re.search(r';!(.*)$', self.text)
        if m:
            for part in m.group(1).split():
                key, val = part.split('=')
                toks = ['T' + x for x in val.split(',')]
                if key == 'w': self.writes = self.writes + toks
                if key == 'r': self.reads = self.reads + toks
        self.trans = op in TRANS or op.replace('_e32', '').replace('_e64', '') in TRANS
        self.dpp = any(m.startswith(('row_', 'quad_perm', 'wave_')) for m in mods)
        self.sdwa = 'sdwa' in op or any(m.startswith(('dst_sel', 'op_sel')) for m in mods)
    def size(self):
        if self.kind == 'hint' or ';@' in self.text: return 0
        if self.kind in ('mfma', 'dsr', 'dsw', 'dma', 'vld', 'vst', 'smem'): return 8
        lit = any(re.match(r'^(0x[0-9a-f]+|\d+)$', o) and int(o, 0) > 64 for o in self.ops) and self.kind in ('valu', 'salu')
        if self.kind == 'valu' and (self.dpp or len(self.ops) >= 4 and self.ops[3] != 'vcc' or self.op.startswith(('v_cvt_pk', 'v_accvgpr', 'v_mul_lo', 'v_readlane', 'v_writelane')) or (self.op.startswith('v_cmp') and self.ops[0] != 'vcc')): return 8
        return 8 if lit else 4
    def states(self):
        return int(self.ops[0], 0) + 1 if self.kind == 'nop' else (0 if self.kind == 'hint' else 1)
    def __str__(self):
        return self.text

class Label:
    def __init__(self, name, align=None): self.name = name; self.align = align
class Raw:
    def __init__(self, text): self.text = text

BIG = 1 << 20
class State:
    def __init__(self):
        self.lg = {}; self.vm = {}
        self.hz = {}
    def copy(self):
        s = State(); s.lg = dict(self.lg); s.vm = dict(self.vm); s.hz = dict(self.hz); return s
    def merge(self, o):
        ch = False
        for a, b in ((self.lg, o.lg), (self.vm, o.vm), (self.hz, o.hz)):
            for k, v in b.items():
                if k not in a or v < a[k]: a[k] = v; ch = True
        return ch

def need_states(st, ins):
    need = 0
    def req(tag, regs, n):
        nonlocal need
        for r in regs:
            a = st.hz.get((tag, r))
            if a is not None and n - a > need: need = n - a
    k = ins.kind
    if k == 'mfma':
        req('valu', ins.reads, 2)
        req('m4', ins.srcab, 8); req('m8', ins.srcab, 12)
        for r in ins.srcc:
            for tag, n in (('m4', 6), ('m8', 10)):
                a = st.hz.get((tag, r))
                if a is not None and st.hz.get(('mtup', tuple(ins.srcc))) != a and n - a > need: need = n - a
        req('vexec', ['exec'], 4)
    elif k == 'valu':
        req('m4', ins.reads + ins.writes, 8); req('m8', ins.reads + ins.writes, 12)
        req('c4', ins.writes, 3); req('c8', ins.writes, 7)
        if not ins.trans: req('trans', ins.reads, 1)
        req('sdwa', ins.reads + ins.writes, 1)
        req('vsgpr', ins.reads, 2)
        if ins.op.startswith(('v_cndmask', 'v_addc')) and len(ins.ops) < 4: req('vsgpr', ['vcc'], 2)
        req('stdata', ins.writes, 2)
        if ins.op.startswith(('v_readfirstlane', 'v_readlane')): req('valu', ins.reads, 1)
        if ins.op.startswith(('v_readlane', 'v_writelane')): req('vsgpr', ins.reads, 4)
        if ins.op.startswith('v_permlane') or ins.dpp: req('valu', ins.reads, 2)
    elif k in ('dsr', 'dsw', 'dma', 'vld', 'vst'):
        req('m4', ins.reads + ins.writes, 8); req('m8', ins.reads + ins.writes, 12)
        req('stdata', ins.writes, 1)
        if k in ('dma', 'vld', 'vst'): req('vsgpr', ins.reads, 5)
        if k == 'dma': req('sm0', ['m0'], 1)
    elif k in ('salu', 'branch', 'smem'):
        req('vsgpr', ins.reads, 3)
    return need

def advance(st, ins):
    n = ins.states()
    for key in list(st.hz):
        st.hz[key] += n
        if st.hz[key] > 24: del st.hz[key]
    k = ins.kind
    def clr(regs):
        for r in regs:
            for tag in ('valu', 'trans', 'sdwa'): st.hz.pop((tag, r), None)
    if k == 'mfma':
        p = ins.passes
        clr(ins.writes)
        for r in ins.writes: st.hz[(f'm{p}', r)] = 0
        st.hz[('mtup', tuple(ins.writes))] = 0
        for r in ins.srcc: st.hz[(f'c{p}', r)] = 0
    elif k == 'valu':
        clr(ins.writes)
        for r in ins.writes:
            if r[0] in 'va' and r != 'vcc':
                st.hz[('valu', r)] = 0
                if ins.trans: st.hz[('trans', r)] = 0
                if ins.sdwa: st.hz[('sdwa', r)] = 0
            elif r == 'exec': st.hz[('vexec', r)] = 0
            else: st.hz[('vsgpr', r)] = 0
    elif k == 'salu':
        for r in ins.writes:
            st.hz.pop(('vsgpr', r), None)
            if r == 'm0': st.hz[('sm0', 'm0')] = 0
    if k == 'vst' and len(ins.data) >= 3:
        for r in ins.data: st.hz[('stdata', r)] = 0
    if k in ('dsr', 'dsw'):
        for r in st.lg: st.lg[r] += 1
        for r in ins.writes: st.lg[r] = 0
    if k == 'smem':
        for r in st.lg: st.lg[r] = -BIG
        for r in ins.writes: st.lg[r] = -BIG
    if k in ('dma', 'vld', 'vst'):
        for r in st.vm: st.vm[r] += 1
        for r in ins.writes: st.vm[r] = 0
    if k == 'wait':
        m = re.search(r'lgkmcnt\((\d+)\)', ins.text)
        if m:
            n = int(m.group(1))
            for r in list(st.lg):
                if st.lg[r] >= n or n == 0: del st.lg[r]
        m = re.search(r'vmcnt\((\d+)\)', ins.text)
        if m:
            n = int(m.group(1))
            for r in list(st.vm):
                if st.vm[r] >= n or n == 0: del st.vm[r]

def need_waits(st, ins):
    lg = vm = None
    for r in ins.reads + ins.writes:
        if r in st.lg:
            if ins.kind in ('dsr', 'dsw') and r in ins.writes and r not in ins.reads and st.lg[r] >= 0: pass
            else:
                v = min(max(st.lg[r], 0), 15); lg = v if lg is None else min(lg, v)
        if r in st.vm:
            if ins.kind in ('vld', 'dma', 'vst') and r in ins.writes and r not in ins.reads: pass
            else:
                v = min(st.vm[r], 63); vm = v if vm is None else min(vm, v)
    return lg, vm

class Prog:
    def __init__(self):
        self.items = []
    def __call__(self, text):
        for line in text.split('\n'):
            line = line.strip()
            if not line or line.startswith(';'): continue
            if line.endswith(':'): self.items.append(Label(line[:-1]))
            elif line.startswith('.'): self.items.append(Raw(line))
            else: self.items.append(I(line))
    def add(self, x):
        if isinstance(x, str): self(x)
        elif isinstance(x, list):
            for y in x: self.add(y)
        else: self.items.append(x)
    def note(self, text):
        for l in text.strip().split('\n'): self.items.append(Raw('; ' + l.strip()))
    def add_sched(self, code):
        for ins in code:
            m = re.search(r';@(\w+)', ins.text)
            if m: self.label(m.group(1))
            else: self.items.append(ins)
    def label(self, name, align=None): self.items.append(Label(name, align))

    def finalize(self, verbose=True):
        self.check_tokens()
        items = self.items
        nins = {'wait': 0, 'nop': 0}
        for rnd in range(200):
            idx = {it.name: i for i, it in enumerate(items) if isinstance(it, Label)}
            entry = {0: State()}
            work = [0]
            problem = None
            problems = {}
            while work:
                i = work.pop()
                st = entry[i].copy()
                first = True
                while i < len(items):
                    it = items[i]
                    if isinstance(it, Label) and not first:
                        if i not in entry: entry[i] = st.copy(); work.append(i)
                        elif entry[i].merge(st): work.append(i)
                        break
                    first = False
                    if isinstance(it, I):
                        lg, vm = need_waits(st, it)
                        ns = need_states(st, it)
                        if lg is not None or vm is not None or ns > 0:
                            p = problems.setdefault(i, [None, None, 0])
                            if lg is not None: p[0] = lg if p[0] is None else min(p[0], lg)
                            if vm is not None: p[1] = vm if p[1] is None else min(p[1], vm)
                            p[2] = max(p[2], ns)
                            w = 's_waitcnt ' + (f'vmcnt({vm}) ' if vm is not None else '') + (f'lgkmcnt({lg})' if lg is not None else '')
                            if lg is not None or vm is not None:
                                hz = dict(st.hz); advance(st, I(w)); st.hz = hz
                            if ns > 0 and lg is None and vm is None: advance(st, I(f's_nop {ns-1}'))
                        advance(st, it)
                        if it.kind == 'branch':
                            t = idx[it.ops[0]]
                            if t not in entry: entry[t] = st.copy(); work.append(t)
                            elif entry[t].merge(st): work.append(t)
                            if it.op == 's_branch': break
                        if it.op == 's_endpgm': break
                    i += 1
            if not problems: break
            anyw = any(p[0] is not None or p[1] is not None for p in problems.values())
            for i in sorted(problems, reverse=True):
                lg, vm, ns = problems[i]
                if lg is not None or vm is not None:
                    j = i; dl = dv = 0; k = i - 1; ok = False
                    tgt = items[i]
                    while k >= 0 and i - k <= 4 and isinstance(items[k], I) and items[k].kind != 'branch':
                        if items[k].kind == 'mfma': ok = True; break
                        if items[k].kind in ('dsr', 'dsw'): dl += 1
                        if items[k].kind in ('dma', 'vld', 'vst'): dv += 1
                        if items[k].kind in ('smem', 'misc'): break
                        k -= 1
                    if ok and (lg is None or lg - dl >= 0) and (vm is None or vm - dv >= 0) and not (lg == 15 and dl):
                        j = k + 1
                        if lg is not None: lg -= dl
                        if vm is not None: vm -= dv
                    prev = items[j] if j < len(items) and isinstance(items[j], I) and items[j].kind == 'wait' and j < i else None
                    if prev is None and j == i and isinstance(items[j-1], I) and items[j-1].kind == 'wait': prev = items[j-1]; j -= 1
                    if prev is not None:
                        m = re.search(r'lgkmcnt\((\d+)\)', prev.text)
                        if m: lg = int(m.group(1)) if lg is None else min(lg, int(m.group(1)))
                        m = re.search(r'vmcnt\((\d+)\)', prev.text)
                        if m: vm = int(m.group(1)) if vm is None else min(vm, int(m.group(1)))
                    w = I('s_waitcnt ' + (f'vmcnt({vm}) ' if vm is not None else '') + (f'lgkmcnt({lg})' if lg is not None else ''))
                    if prev is not None: items[j] = w
                    else: items.insert(j, w); nins['wait'] += 1
                elif not anyw:
                    items.insert(i, I(f's_nop {ns-1} ; hz')); nins['nop'] += 1
        else:
            raise RuntimeError("no fixpoint")
        if verbose: print(f"; finalize: inserted {nins}")
    def rename(self, a, b):
        for k, it in enumerate(self.items):
            if isinstance(it, Label) and it.name.startswith(a): it.name = b + it.name[len(a):]
            if isinstance(it, I) and it.kind == 'branch' and it.ops[0].startswith(a): self.items[k] = I(it.text.replace(a, b))
    def check_tokens(self, ignore=()):
        seen_r, seen_w = {}, set()
        for it in self.items:
            if not isinstance(it, I): continue
            for r in it.reads:
                if r[0] == 'T':
                    if r not in seen_w: raise RuntimeError(f"token {r} read before any write: {it.text}")
                    seen_r[r] = it
            for r in it.writes:
                if r[0] == 'T':
                    if r in seen_r and r[1:] not in ignore: raise RuntimeError(f"token {r} written after read: {it.text}")
                    seen_w.add(r)
    def text(self):
        out = []
        for it in self.items:
            if isinstance(it, Label):
                if it.align: out.append(f".p2align {it.align}")
                out.append(it.name + ':')
            elif isinstance(it, I) and it.kind == 'hint': pass
            else: out.append('  ' + it.text)
        return '\n'.join(out) + '\n'

class F:
    def __init__(self, text, lo=0, hi=BIG, after=(), lag=1, cls=None, pr=None):
        self.ins = [I(t) for t in text.split('\n') if t.strip()]
        self.lo, self.hi, self.after, self.lag = lo, hi, list(after), lag
        k = self.ins[-1]
        self.cls = cls or ('E' if k.trans else {'valu': 'V', 'dsr': 'D', 'dsw': 'D', 'dma': 'G', 'vld': 'G', 'vst': 'G'}.get(k.kind, 'S'))
        self.nins = len([i for i in self.ins if ';@' not in i.text])
        self.gap = None
        self.after2 = []
        self.pr = hi if pr is None else pr

def schedule(mfmas, fillers, keep_empty=(), wide=(), verbose=None, horizon=48, nos=(), quiet=False, rate=None):
    n = len(mfmas)
    out = []
    for k, f in enumerate(fillers): f.seq = k
    future = sorted(fillers, key=lambda f: -f.lo)
    byhi = sorted([f for f in fillers if f.cls in 'EDGB'], key=lambda f: f.hi)
    pend = []
    over = 0
    pattern = []
    cap = lambda g: 0 if g in keep_empty else (2 if g in wide else 1)
    credit = 0
    for g in range(n):
        out.append(I(mfmas[g]))
        if rate: credit = min(credit + rate - 9, 48)
        while future and (future[-1].lo <= g or g == n - 1): pend.append(future.pop())
        def ready(f):
            return f.lo <= g and all(a.gap is not None and a.gap + f.lag <= g for a in f.after) and all(a.gap is not None and a.gap + l <= g for a, l in f.after2)
        chosen = []
        used = {'S': 0, 'D': 0, 'V': 0, 'X': 0, 'B': 0}
        def fits(f):
            c = f.cls
            if c == 'S' and g in nos: return False
            if c == 'S': return used['S'] + f.nins <= 1 or (used['S'] + f.nins <= 2 and used['X'] + used['B'] == 0 and used['D'] + used['V'] <= 1)
            if g in keep_empty or used['B']: return False
            if rate and c == 'V' and f.pr >= 0 and credit <= 0 and not getattr(f, 'opt', False) and f.hi > g + getattr(f, 'slack', 24): return False
            if c == 'B': return used['D'] + used['V'] + used['X'] == 0
            if g in wide and used['V'] == 0:
                if c == 'D' and used['D'] == 0: return True
                if c in 'EG' and used['X'] == 0: return True
            if used['X']: return False
            if used['S'] > 1 and (c in 'EG' or used['D'] + used['V'] >= 1): return False
            if c in 'EG': return used['D'] + used['V'] == 0
            if c == 'D': return used['D'] == 0 and used['V'] <= 1
            return used['D'] + used['V'] < 2
        while True:
            byhi = [f for f in byhi if f.gap is None]
            must = None; slots = 0; d0 = g
            for k, f in enumerate(byhi):
                if f.hi > g + horizon: break
                while d0 < min(f.hi, n - 1): d0 += 1; slots += cap(d0)
                if k + 1 > slots: must = f.hi; break
            pend.sort(key=lambda f: (0 if f.hi <= g else (1 if (must is not None and f.cls in 'EDGB' and f.hi <= must) else 2), f.hi if f.hi <= g or (must is not None and f.hi <= must) else f.pr, f.seq))
            pick = None
            for f in pend:
                if not ready(f): continue
                if fits(f): pick = f; break
                if f.hi <= g:
                    pick = f; over += 1
                    if verbose and verbose.startswith('!'): print(f"; overflow at gap {g}: {f.ins[-1].text}")
                    break
            if pick is None: break
            pick.gap = g; pend.remove(pick); chosen.append(pick)
            credit -= sum(i.size() for i in pick.ins)
            used[{'E': 'X', 'G': 'X'}.get(pick.cls, pick.cls)] += pick.nins if pick.cls == 'S' else 1
        order = {'S': 0, 'B': 1, 'D': 2, 'G': 3, 'E': 4, 'V': 5}
        srt = sorted(chosen, key=lambda f: order[f.cls])
        pos = {id(f): k for k, f in enumerate(srt)}
        if all(pos.get(id(a), -1) < pos[id(f)] for f in srt for a in f.after + [x for x, _ in f.after2]): chosen = srt
        pattern.append(''.join(f.cls for f in chosen) or '-')
        for f in chosen: out += f.ins
    late = [f for f in fillers if f.gap is not None and f.gap > f.hi]
    schedule.late = len(late) + len(pend)
    if not quiet and any(f.cls in 'DVEB' for f in late): raise RuntimeError("register feeder past its deadline: " + [f for f in late if f.cls in 'DVEB'][0].ins[-1].text)
    if late and not quiet: print(f"; WARNING {len(late)} fillers past deadline, e.g. gap {late[0].gap} > {late[0].hi}: {late[0].ins[-1].text}")
    pend = [f for f in pend if not getattr(f, 'opt', False)]
    if pend:
        pend.sort(key=lambda f: f.seq)
        for f in pend:
            out += f.ins; f.gap = n; over += 1
    if verbose:
        print(f"; schedule {verbose}: {n} mfma, {len(fillers)} fillers, {over} overflow ({len(pend)} after end)")
        if verbose.startswith('!'): print(';  ' + ' '.join(pattern))
    return out

NOSCC = ('s_mov_b32', 's_mov_b64', 's_cselect_b32', 's_cselect_b64', 's_mul_i32', 's_getpc_b64', 's_movk_i32')
def dense(lines, gsp=64, verbose=None, wsp=0, dlat=0):
    L = []
    for x in lines:
        if isinstance(x, I): L.append(x)
        else: L += [I(t) for t in x.split('\n') if t.strip()]
    n = len(L); preds = [dict() for _ in range(n)]
    lastw, readers = {}, {}
    for i, ins in enumerate(L):
        R, W = list(ins.reads), list(ins.writes)
        if ins.kind == 'salu':
            if ins.op not in NOSCC: W.append('scc')
            if ins.op.startswith(('s_cselect', 's_addc')): R.append('scc')
        if ins.op.startswith('v_cndmask') and len(ins.ops) < 4: R.append('vcc')
        if ins.kind in ('misc', 'wait', 'hint'): W.append('BAR')
        if ins.kind in ('dsr', 'dsw', 'dma', 'vld', 'vst'): R.append('BAR')
        if ins.kind in ('dma', 'vld', 'vst'): W.append('VM')
        if ins.kind == 'dsw': W.append('LDSW')
        if ins.kind == 'dsr' and 'nodep' not in ins.text: R.append('LDSW')
        for r in R:
            if r in lastw:
                j = lastw[r]; p = L[j]; lat = 0
                if r[0] in 'va' and r != 'vcc':
                    if p.kind == 'mfma': lat = 0 if (ins.kind == 'mfma' and ins.srcc == p.writes) else 44
                    elif p.kind == 'dsr': lat = 110
                    elif p.kind == 'valu': lat = 12 if (ins.kind == 'mfma' or ins.op.startswith('v_permlane') or p.trans) else 0
                elif p.kind == 'valu': lat = 12
                elif r[0] == 'T' and p.kind == 'dma': lat = dlat
                preds[i][j] = max(preds[i].get(j, 0), lat)
        for r in W:
            if r in lastw:
                j = lastw[r]; preds[i][j] = max(preds[i].get(j, 0), gsp if r == 'VM' else wsp if r == 'LDSW' else (44 if L[j].kind == 'mfma' and ins.kind != 'mfma' else 0))
            for j in readers.get(r, []):
                if j != i: preds[i][j] = max(preds[i].get(j, 0), 16 if L[j].kind == 'mfma' and ins.kind == 'valu' else (12 if L[j].kind == 'vst' else 0))
        for r in R: readers.setdefault(r, []).append(i)
        for r in W: lastw[r] = i; readers[r] = []
    done = {}; t = 0; lastM = -100; out = []; left = list(range(n)); prevk = None
    while left:
        cand = [i for i in left if all(j in done for j in preds[i])]
        rt = {i: max([done[j] + l for j, l in preds[i].items()] + [0]) for i in cand}
        ms = [i for i in cand if L[i].kind == 'mfma' and rt[i] <= t]
        ot = [i for i in cand if L[i].kind != 'mfma' and rt[i] <= max(t, lastM + 8)]
        if ms and (t >= lastM + 16 or not ot): i = ms[0]
        elif ot:
            pref = [k for k in ot if L[k].kind in ('dsr', 'dsw', 'dma', 'vld', 'vst', 'salu', 'wait', 'misc')] if prevk == 'mfma' else []
            i = (pref or ot)[0]
        else: i = min(cand, key=lambda k: (rt[k], k))
        ins = L[i]; t = max(t, rt[i])
        if ins.kind == 'mfma': t = max(t, lastM + 16); lastM = t; done[i] = t; t += 4
        else:
            if ins.kind in ('valu', 'dsr', 'dsw', 'dma', 'vld', 'vst'): t = max(t, lastM + 8)
            done[i] = t; t += 8 if (ins.trans or ins.kind in ('dma', 'vld', 'vst')) else (0 if ins.kind == 'hint' else 4)
        prevk = ins.kind; out.append(ins); left.remove(i)
    if verbose: print(f"; dense {verbose}: {n} instr, est {t} cycles")
    return out
```

```python
from k1 import *
S_ = lambda qt, kt: 64 + 16 * qt + 4 * kt
Q_ = lambda qt, ds: 128 + 16 * qt + 4 * ds
P_ = lambda b, qt, ks: 192 + 32 * b + 8 * qt + 4 * ks
C0, C2, N1, N3 = 24, 40, 56, 60
N0, N2 = 16, 24
O_ = lambda qt, dt: 32 * qt + 4 * dt
L_ = lambda qt: 128 + 4 * qt
ONES = 144
KF = lambda kt, ds: 160 + 16 * kt + 4 * ds
VF = lambda dt, ks: 224 + 8 * (dt % 4) + 4 * ks
MASK = lambda kt, r: 32 + 2 * (4 * kt + r)
CIN = {0: lambda kt: C0 + 4 * kt, 1: lambda kt: N1, 2: lambda kt: C2 + 4 * kt, 3: lambda kt: N3}
CINM = lambda kt: C0 + 4 * kt
rdK = lambda kt, ds, off: f"ds_read_b128 {ar(KF(kt, ds))}, v{vKRD} offset:{off + kt * 4096 + ds * 1024}"
rdV = lambda dt, ks, off: f"ds_read_b128 {ar(VF(dt, ks))}, v{vVRD} offset:{off + dt * 2048 + ks * 1024}"

def softmax_quad(fl, qt, kt, pb, lo, hi, pr):
    s = S_(qt, kt)
    es = [F(f"v_exp_f32 v{s+r}, v{s+r}", lo, hi - 5 + r, pr=pr + 2 * r) for r in range(4)]
    fl.extend(es)
    d = P_(pb, qt, kt >> 1) + 2 * (kt & 1)
    for z in range(2):
        fl.append(F(f"v_cvt_pk_bf16_f32 v{d+z}, v{s+2*z}, v{s+2*z+1}", lo, hi, after=es[2*z:2*z+2], pr=pr + 2 * z + 3))

def mask_update(dst, src):
    return [f"v_cndmask_b32 v{dst + 4*kt + r}, v{vNEG}, v{src(kt, r)}, {sr(MASK(kt, r), 2)}" for kt in range(4) for r in range(4)]

import random, est
SEEDS = {'l2e': 343, 'l2o': 106, 'l2m': 343}
def body(p, *a, tries=1, **k):
    best = None
    force = os.environ.get('SEED_' + a[4]) or SEEDS.get(a[4])
    for seed in (range(tries) if force is None or os.environ.get('LIST') else [int(force)]):
        code = body1(*a, seed=seed, show=tries == 1, **k)
        c = est.est([i.text for i in code if ';@' not in i.text])[1] + 1000 * (schedule.late if tries > 1 else 0)
        if best is None or c < best[0]: best = (c, seed)
        if os.environ.get('LIST') and tries > 1 and c <= int(os.environ['LIST']): print('; cand', a[4], seed, c)
    if tries > 1: code = body1(*a, seed=best[1], show=True, **k)
    if os.environ.get('V'): print(';', a[4], 'est', best, est.est([i.text for i in code if ';@' not in i.text], True))
    X = os.environ.get('AX', '')
    if a[4][0] == 'l':
        if 'b' in X: code = [i for i in code if i.op != 's_barrier']
        if 'g' in X: code = [i for i in code if i.kind != 'dma']
        if 'v' in X: code = [i for i in code if 'vmcnt' not in i.text]
    p.add_sched(code)
    if k.get('nextk', True): p(f"HINT {ar(KF(0, 0))}")
    if k.get('tail'): p(k['tail'][-1])

def body1(par, qk, pv, cin, name, nextk=True, dma=True, extra=None, tail=None, nwide=0, seed=0, show=False, taken=True, prevx=0, last=False):
    rnd = random.Random(seed)
    M, fl = [], []
    nq, npv = len(qk), len(pv)
    endc = {}
    quads = []; vlast = {}
    for kt in range(4):
        for i, qt in enumerate(snake(qk, kt + 1)):
            for z, ds in enumerate(snake(range(4), i)):
                d = vr(S_(qt, kt)); M.append(mfma(d, ar(KF(kt, ds)), vr(Q_(qt, ds)), vr(cin[qt](kt)) if z == 0 else d))
            endc[(qt, kt)] = len(M) - 1; quads.append((qt, kt))
    g_sum = len(M)
    SN3 = os.environ.get('SN3', '1') == '1'
    for qt in pv:
        for ks in snake(range(2), 1 if SN3 and qt == 3 else 0): M.append(mfma(ar(L_(qt)), ar(ONES), vr(P_(par, qt, ks)), ar(L_(qt))))
    g_pv = len(M)
    for dt in range(8):
        for i, qt in enumerate(snake(pv, dt + 1)):
            for ks in snake(range(2), i): vlast[(dt, ks)] = len(M); M.append(mfma(ar(O_(qt, dt)), ar(VF(dt, ks)), vr(P_(par, qt, ks)), ar(O_(qt, dt))))
    n = len(M)
    e2 = n - 1 if last else n - 2
    LAT = int(os.environ.get('LAT', '6'))
    if nq: softmax_quad(fl, 3, 3, par, 0, min(g_sum + 2 * npv - 5, endc[(3, 3)] - 4), 0)
    assert quads.pop() == (3, 3)
    for k, (qt, kt) in enumerate(quads):
        pr = 8 + (n - 14) * k // max(1, len(quads))
        softmax_quad(fl, qt, kt, par ^ 1, endc[(qt, kt)] + 4, e2, pr)
    koff1 = 16384 if par == 0 else 0
    koff2 = 0 if par == 0 else 16384
    voff = 16384 * par
    k1 = []
    if nq:
        for kt in (2, 3):
            for ds in range(4):
                hi = max(4 * nq * kt + ds - LAT, 4 * (kt - 2) + ds)
                f = F(rdK(kt, ds, koff1), 0, hi, pr=hi - 8); fl.append(f); k1.append(f)
    vrd = []
    for dt in range(8):
        if dt < 4 and not nq: continue
        for ks in range(2):
            g0 = g_pv + 2 * npv * dt + ks
            lo = 0 if dt < 4 else vlast[(dt - 4, ks)]
            hi = max(g0 - LAT, lo)
            f = F(rdV(dt, ks, voff), lo, hi, pr=hi - (10 if dt < 4 else 4)); fl.append(f); vrd.append(f)
    gb = g_pv + 2 * npv * 3 + (int(os.environ.get('GBO', '-12')) if name[:2] == 'l2' else 0)
    if nextk or dma:
        bar = F("s_waitcnt vmcnt(12)\ns_barrier", gb, gb, cls='B'); fl.append(bar)
        if os.environ.get('BS') and name[:2] == 'l2': bar.cls = 'S'; bar.pr = -9
    if nextk:
        aft = [bar]
        if par == 0:
            x = F(f"v_xor_b32 v{vKRD}, 0x8000, v{vKRD}", 0, gb - 1, after=k1); fl.append(x); aft.append(x)
        for kt in (0, 1):
            for ds in range(4):
                hi = min(e2, n + 4 * nq * kt + ds - LAT - 3)
                hi = min(hi, e2 - (7 - 4 * kt - ds))
                fl.append(F(rdK(kt, ds, koff2), gb + 1, hi, after=aft, pr=hi - 4))
    if par == 1 and nextk: fl.append(F(f"v_xor_b32 v{vVRD}, 0x8000, v{vVRD}", 0, n - 2, after=vrd))
    X = dict(n=n, g_sum=g_sum, g_pv=g_pv, endc=endc, gb=gb, pre=[], mid=[], end=[])
    if extra: extra(fl, X)
    if dma:
        ch = DmaChain(fl)
        kd = [([], f"buffer_load_dwordx4 v{vDMA}, {sr(SRD_KVL)}, s{sKOFF} offen offset:{q * 1024} {KVL_FLAGS} lds") for q in range(4)]
        kd[0] = ([f"s_add_u32 m0, s{sKM0}, {16384 * par}", f"s_add_u32 s{sKOFF}, s{sKOFF}, 0x8000"], kd[0][1])
        nx = sum(len(l) for l, _ in X['pre'] + X['mid'])
        bar.ins[0] = I(f"s_waitcnt vmcnt({12 + nx + prevx})")
        body1.nx = nx + sum(len(l) for l, _ in X['end'])
        sp = X.get('sp') or max(4, min(8, (gb - 4) // (4 + nx)))
        for l, aft in X['pre']: ch.add(l, 0, gb - 1 - 4 * sp, after=aft, sp=sp)
        r = ch.add(kd, 0, gb - 1, sp=sp)
        for l, aft in X['mid']: ch.add(l, 0, gb - 1, after=aft, sp=sp)
        bar.after.append(ch.lastg)
        prev = ch.lastg
        for x in X.get('aft', []): prev = F(x, 0, n - 24, after=[prev], cls='S'); fl.append(prev)
        if par == 1: fl.append(F(f"s_xor_b32 s{sKM0}, s{sKM0}, 0x8000", 0, n - 2, after=r[:1]))
        vd = [([], f"buffer_load_dwordx4 v{vDMA}, {sr(SRD_KVL)}, s{sVOFF} offen offset:{q * 1024} {KVL_FLAGS} lds") for q in range(4)]
        vd[0] = ([f"s_add_u32 m0, s{sVM0}, {16384 * (par ^ 1)}", f"s_add_u32 s{sVOFF}, s{sVOFF}, 0x8000"], vd[0][1])
        pre = vd[0][0]
        nx = sum(len(l) for l, _ in X['end'])
        sp = max(3, min(8, (n - 3 - gb) // (4 + nx)))
        r = ch.add(vd, 0, e2 - sp * nx, sp=sp)
        for f in r: f.after.append(bar)
        for l, aft in X['end']: ch.add(l, 0, n - 2, after=aft, sp=sp)
        if par == 0: fl.append(F(f"s_xor_b32 s{sVM0}, s{sVM0}, 0x8000", 0, n - 2, after=r[:1]))
    keep = set()
    nos = set()
    for kt in range(4):
        for ds in range(4): nos.add((4 * nq * kt + ds - 1) % n)
    for dt in range(8):
        for ks in range(2): nos.add(g_pv + 2 * npv * dt + ks - 1)
    nos.discard(gb)
    if tail:
        if taken: keep = {n - 1}
        prev = []
        for k, tx in enumerate(tail[:-1]):
            f = F(tx, n - 22, n - 2, after=prev + [x for x in fl if x.cls == 'S'], cls='S', lag=1); fl.append(f); prev = [f]
    if name[:2] == 'l4':
        for x in os.environ.get('KE4', '').split(','):
            if x: keep.add({'h': 0, 'i': 1, 'a': gb + 1, 'b': gb - 1, 'e': n - 2, 'z': n - 1}[x])
        if os.environ.get('SPR4'):
            for f in fl:
                if f.cls == 'E' and f.pr > 8: f.lo = max(f.lo, int(f.pr * float(os.environ['SPR4'])))
    if seed:
        for f in fl:
            if f.pr >= 0: f.pr += rnd.randint(-JIT, JIT)
        wide = set(rnd.sample([g for g in range(n - 1) if g != gb], nwide))
    else:
        wide = set((2 * k + 1) * n // (2 * nwide) for k in range(nwide)) if nwide else set()
        wide = set(w + 1 if w == gb else w for w in wide)
    return schedule(M, fl, keep_empty=keep, wide=wide, nos=nos, verbose=name if show else None, quiet=not show)
JIT = 6
U4 = int(os.environ.get('U4', '0')) and XH == 15
sHK, vPB = 82, 21
def loop_tail(lbl):
    return [f"s_sub_u32 s{sCNT}, s{sCNT}, 1", f"s_lshr_b32 s{sHK}, s{sHK}, 1", f"s_bitcmp1_b32 s{sHK}, 0", f"s_cselect_b32 s3, 0, s{sCNT}", "s_cmp_gt_u32 s3, 1", f"s_cbranch_scc1 {lbl}"]
def dispatch(p, name, c):
    p(f"""
    L_ev{name}:
    s_bitcmp1_b32 s{sHK}, 0
    s_cbranch_scc1 L_hook{name}
    L_last{name}:
    s_cmp_eq_u32 s{sCNT}, 0
    s_cbranch_scc1 L_after{name}
    """)
    for x in mask_update(c, lambda kt, r: c + 4 * kt + r): p(x)
    p(f"""
    s_branch L_loop{name}
    L_hook{name}:
    s_cmp_lt_u32 s{sHK}, 4
    s_cbranch_scc1 L_hook{name}_b
    s_cmp_gt_u32 s{sCNT}, 1
    buffer_store_dword v{vONE}, v{vATOM}, {sr(SRD_FL)}, s{sLF} offen offset:4 sc1
    s_cbranch_scc1 L_loop{name}
    s_branch L_last{name}
    L_hook{name}_b:
    s_cmp_eq_u32 s{sHK}, 1
    s_cbranch_scc1 L_hook{name}_chk
    s_cmp_gt_u32 s{sCNT}, 1
    {polls.load("late")}
    s_cbranch_scc1 L_loop{name}
    s_branch L_last{name}
    L_hook{name}_chk:
    s_waitcnt vmcnt(8)
    """)
    emit(p, polls.loop("late", f"hook{name}"))
    p(f"""
    L_hook{name}_ok:
    s_cmp_gt_u32 s{sCNT}, 1
    s_cbranch_scc1 L_loop{name}
    s_branch L_last{name}
    L_after{name}:
    """)

K0T = 224
PRE = {}
def gemm_end(fl, bar, vm):
    from prepf import Seq
    lastx = [e[0][1] for e in vm.order if f"{sr(SRD_X)}" in e[0][1].ins[-1].text or f"{sr(SRD_WQ)}" in e[0][1].ins[-1].text][-1]
    sq = Seq(fl)
    o = [f"v_and_b32 v14, 15, v{vLANE}", f"v_lshrrev_b32 v15, 4, v{vLANE}", "v_lshlrev_b32 v15, 2, v15", "v_sub_u32 v14, v14, v15",
         "v_lshrrev_b32 v15, 6, v0", "v_lshl_add_u32 v14, v15, 4, v14", "v_mov_b32 v15, 0"]
    o += [f"v_cmp_le_i32 {sr(MASK(kt, r), 2)}, {16 * kt + r}, v14" for kt in range(4) for r in range(4)]
    m = sq.add(o, 64 * 29 + 44, 64 * 31 - 10, after=[lastx], stag=1.5)
    for kt in range(4):
        for r in range(4):
            pass
    s_ = Seq(fl);
    for x in (f"s_mov_b32 s{sHK}, {0xe if U4 else 0x1a}", f"s_mov_b32 s{sVOFF}, 0x{2 * 32768 + 16384:x}", f"s_add_u32 s{sKM0}, s{sW4K}, 0x{WBASE:x}", f"s_add_u32 s{sVM0}, s{sW4K}, 0x8000",
              f"s_lshl_b32 s{sLF}, s{sH}, 3", f"s_add_u32 s{sLF}, s{sLF}, s{sJ}", f"s_lshl_b32 s{sLF}, s{sLF}, 7", f"s_add_u32 s{sLF}, s{sLF}, {KFLAG}"):
        s_.lag = 1; sc = s_.add([x], 64 * 30, 64 * 31 - 2)
    prev = m
    for r in range(4):
        a = F(f"s_cmp_eq_u32 s{sJ}, 0\ns_cselect_b64 s[0:1], {sr(MASK(0, r), 2)}, -1", 0, 64 * 31 + 10 + 3 * r, cls='S'); a.after2.append((prev, 2))
        prev = F(f"v_cndmask_b32 v{C0 + r}, v{vNEG}, v15, s[0:1]", 0, 64 * 31 + 11 + 3 * r, after=[a]); fl += [a, prev]
    for ds in range(4): fl.append(F(f"ds_read_b128 {ar(K0T + 4*ds)}, v{vKRD} offset:{ds * 1024}", 0, 2040, after=[bar[31]]))
    PRE['mul'] = {}
    for ct in ((0, 1, 4, 5) if QS else range(7)):
        for qt in range(4):
            for e in range(4):
                r = accQ(qt, ct) + e
                f = F(f"v_mul_f32 v{r}, s{sSC}, v{r}", gemm_stream.lastQ[accQ(qt, ct)] + 5, BIG, after=[sc], pr=3000 + 100 * qt + ct); f.opt = True
                fl.append(f); PRE['mul'][r] = f
sLF = 88

def attn_prologue(p, st):
    L = []
    late = list(gemm_stream.late)
    def qk(qt, kt, c, kf):
        for ds in range(4):
            d = vr(S_(qt, kt)); L.append(mfma(d, ar(kf(ds)), vr(Q_(qt, ds)), c if ds == 0 else d))
    def sm(qt, kt):
        s = S_(qt, kt); d = P_(0, qt, kt >> 1) + 2 * (kt & 1)
        for z in range(2): L.extend([f"v_exp_f32 v{s+2*z}, v{s+2*z}", f"v_exp_f32 v{s+2*z+1}, v{s+2*z+1}"])
        for z in range(2): L.append(f"v_cvt_pk_bf16_f32 v{d+z}, v{s+2*z}, v{s+2*z+1}")
    for kt in range(1, 4):
        for ds in range(4): L.append(rdK(kt, ds, 0))
    for pre, x in late: L += pre + [x]
    for qt in range(4):
        for k in range(16):
            s = 128 + 32 * qt + 2 * k
            for r in (s, s + 1):
                if (r not in PRE['mul'] and not QS) or (r in PRE['mul'] and PRE['mul'][r].gap is None): L.append(f"v_mul_f32 v{r}, s{sSC}, v{r}")
            L.append(f"v_cvt_pk_bf16_f32 v{128 + 16 * qt + k}, v{s}, v{s+1}")
        qk(qt, 0, vr(C0) if qt == 0 else '0', lambda ds: K0T + 4 * ds)
    for qt in range(4):
        s = S_(qt, 0); m, t = 14 + qt, 18 + qt
        L += [f"v_max3_f32 v{m}, v{s}, v{s+1}, v{s+2}", f"v_max_f32 v{m}, v{m}, v{s+3}"]
        for op in ("v_permlane32_swap_b32", "v_permlane16_swap_b32"): L += [f"v_mov_b32 v{t}, v{m}", f"{op} v{t}, v{m}", f"v_max_f32 v{m}, v{m}, v{t}"]
        if qt == 0:
            L.append(f"v_sub_f32 v{t}, 0, v{m}")
            L += [f"v_mov_b32 v{C0 + r}, v{t}" for r in range(4)]
            tail_ = [f"v_mov_b32 v{N0 + r}, v{C0}" for r in range(4)]
            for kt in range(1, 4):
                for r in range(4): L += [f"s_cmp_eq_u32 s{sJ}, 0", f"s_cselect_b64 s[{84 + 0}:{85}], {sr(MASK(kt, r), 2)}, -1".replace("s[84:85]", ("s[0:1]", "s[66:67]")[r & 1]), f"v_cndmask_b32 v{C0 + 4*kt + r}, v{vNEG}, v{t}, {('s[0:1]', 's[66:67]')[r & 1]}"]
        else:
            base, cnt = {1: (N1, 4), 2: (C2, 16), 3: (N3, 4)}[qt]
            L += [f"v_sub_f32 v{base + r}, 0, v{m}" for r in range(cnt)]
        for kt in range(1, 4): qk(qt, kt, vr(CIN[qt](kt)), lambda ds: KF(kt, ds))
        if qt == 1:
            L.append("s_waitcnt lgkmcnt(0)\ns_barrier ;! r=K1,V0")
            for pre, x in dma_KV(0, 3) + dma_KV(1, 2): L += pre + [x]
            L.append(f"s_mov_b32 s{sKOFF}, 0x{3 * 32768:x}")
    for ds in range(4): L.append(rdK(0, ds, 16384))
    for qt in range(4):
        L += [f"v_sub_f32 v{S_(qt,0)+r}, v{S_(qt,0)+r}, v{14+qt}" for r in range(4)]
        for kt in range(4):
            if (qt, kt) != (3, 3): sm(qt, kt)
    for ds in range(4): L.append(rdK(1, ds, 16384))
    L += tail_
    p.add(dense(L, gsp=int(os.environ.get('PGSP', '160')), verbose="attn_pro"))

def attention(p, st, fz=None):
    p("L_attn:")
    attn_prologue(p, st)
    p(f"HINT {ar(KF(0, 0))}")
    st(p, '1a')
    A4 = [0, 1, 2, 3]
    W4, W2, TR = int(os.environ.get('W4', '0')), int(os.environ.get('W2', '7')), int(os.environ.get('TR', '300'))
    p(f"s_mov_b32 s{sCNT}, s{sJ}\ns_cmp_lt_u32 s{sCNT}, 2\ns_cbranch_scc1 L_last4")
    p.label("L_loop4", 6)
    if os.environ.get('STAMP') == 'L': p(f"s_memtime s[0:1]\ns_add_u32 m0, s{sCNT}, 32\ns_waitcnt lgkmcnt(0)\nv_writelane_b32 v23, s0, m0")
    body(p, 0, A4, A4, {**CIN, 0: lambda kt: N0}, "l4e", nwide=W4, extra=fz.ex4e)
    body(p, 1, A4, A4, CIN, "l4o", tail=loop_tail("L_loop4"), nwide=W4, prevx=body1.nx)
    dispatch(p, "4", C0)
    st(p, 'a')
    for x in mask_update(C0, lambda kt, r: N1): p(x)
    cin = dict(CIN); cin[1] = CINM
    if XH == 15:
        body(p, 0, [1, 2, 3], A4, cin, "b43", extra=fz.ex43, tail=[f"s_cmp_lg_u32 s{sJ}, 7", "s_cbranch_scc1 L_nomask2"])
        for x in mask_update(C2, lambda kt, r: C2 + 4 * kt + r): p(x)
        p("L_nomask2:")
    else: body(p, 0, [1, 2, 3], A4, cin, "b43", extra=fz.ex43)
    st(p, 'a')
    def ex32(fl, d):
        fz.ex32(fl, d)
        for r in range(4): fl.append(F(f"v_mov_b32 v{N2 + r}, v{C2}", 0, d['n'] - 1))
    body(p, 1, [2, 3], [1, 2, 3], CIN, "b32", extra=ex32, prevx=body1.nx)
    st(p, 'a')
    ctx_setup(p)
    ctx_store(p, (0, 1))
    st(p, '1a')
    p(f"s_xor_b32 s{sCNT}, s{sJ}, {XH}\ns_sub_u32 s{sCNT}, s{sCNT}, s{sJ}\n{f's_lshr_b32 s{sCNT}, s{sCNT}, 1' if U4 else f's_sub_u32 s{sCNT}, s{sCNT}, 1'}\ns_lshr_b32 s{sHK}, s{sHK}, 1\ns_bitcmp1_b32 s{sHK}, 0\ns_cselect_b32 s3, 0, s{sCNT}\ns_cmp_lt_u32 s3, 2\ns_cbranch_scc1 L_ev2")
    p.label("L_loop2", 6)
    if os.environ.get('STAMP') == 'L': p(f"s_memtime s[0:1]\ns_add_u32 m0, s{sCNT}, 16\ns_waitcnt lgkmcnt(0)\nv_writelane_b32 v23, s0, m0")
    if U4:
        body(p, 0, [2, 3], [2, 3], {**CIN, 2: lambda kt: N2}, "l2e", nwide=W2 - 1, tries=TR, last=True)
        body(p, 1, [2, 3], [2, 3], {**CIN, 2: lambda kt: N2}, "l2m", nwide=W2 - 1, tries=TR, last=True)
    body(p, 0, [2, 3], [2, 3], {**CIN, 2: lambda kt: N2}, "l2e", nwide=W2 - 1, tries=TR, last=True)
    body(p, 1, [2, 3], [2, 3], CIN, "l2o", tail=loop_tail("L_loop2"), nwide=W2 + 1, tries=TR)
    dispatch(p, "2", C2)
    st(p, '1ta')
    attn_tail(p, fz)

DEF3 = int(os.environ.get('DEF3', '0'))
def attn_tail(p, fz):
    L = []
    nd = " ; nodep"
    def sm(kt, pb):
        s = S_(3, kt); d = P_(pb, 3, kt >> 1) + 2 * (kt & 1)
        L.extend([f"v_exp_f32 v{s+r}, v{s+r}" for r in range(4)] + [f"v_cvt_pk_bf16_f32 v{d+z}, v{s+2*z}, v{s+2*z+1}" for z in range(2)])
    mk = mask_update(C0, lambda kt, r: N3)
    for kt in (2, 3):
        for ds in range(4): L.append(rdK(kt, ds, 16384) + nd)
    L += mk[:8]; sm(3, 0); L += mk[8:]
    for dt in range(4):
        for ks in range(2): L.append(rdV(dt, ks, 0) + nd)
    for kt in range(4):
        for ds in range(4):
            d = vr(S_(3, kt)); L.append(mfma(d, ar(KF(kt, ds)), vr(Q_(3, ds)), vr(CINM(kt)) if ds == 0 else d))
    L.append(f"HINT {ar(KF(3, 3))}\ns_waitcnt vmcnt(0)\ns_barrier")
    L += fz.tail_dma()
    for qt in (2, 3):
        for ks in range(2): L.append(mfma(ar(L_(qt)), ar(ONES), vr(P_(0, qt, ks)), ar(L_(qt))))
    stage = fz.tail_stage()
    for dt in range(8):
        for qt in (2, 3):
            for ks in range(2): L.append(mfma(ar(O_(qt, dt)), ar(VF(dt, ks)), vr(P_(0, qt, ks)), ar(O_(qt, dt))))
        if dt < 4:
            for ks in range(2): L.append(rdV(dt + 4, ks, 0) + nd)
            sm(dt, 1)
    V2 = lambda dt, ks: KF(0, 0) + 8 * dt + 4 * ks
    for dt in range(8):
        for ks in range(2): L.append(f"ds_read_b128 {ar(V2(dt, ks))}, v{vVRD} offset:{16384 + dt * 2048 + ks * 1024}" + nd)
    for ks in range(2): L.append(mfma(ar(L_(3)), ar(ONES), vr(P_(1, 3, ks)), ar(L_(3))))
    for dt in range(8):
        for ks in range(2): L.append(mfma(ar(O_(3, dt)), ar(V2(dt, ks)), vr(P_(1, 3, ks)), ar(O_(3, dt))))
    q = Prog(); ctx_store(q, (2, 3), (40, 24, 40, 24, 128, 140, 152, 164) if DEF3 else (40, 24)); E = [i for i in q.items]
    if DEF3:
        k0 = [k for k, i in enumerate(E) if i.op == 'v_rcp_f32'][1] + 1
        attn_tail.rest = E[k0:-2]; E = E[:k0] + E[-2:]
    if os.environ.get('STG', 'a') == 'a': L += stage + E
    else: L += E + stage
    L += fz.tail_reads()
    code = dense(L, gsp=int(os.environ.get('TGSP', '70')), wsp=int(os.environ.get('WSP', '52')), dlat=int(os.environ.get('DLAT', '900')), verbose="attn_tail")
    X = os.environ.get('TX', '')
    if 'w' in X: code = [i for i in code if i.kind != 'dsw']
    if 'u' in X: code = [i for i in code if i.kind != 'dma' or 'offset:0 ' in i.text]
    if 's' in X: code = [i for i in code if i.kind != 'vst']
    if 'b' in X: code = [i for i in code if i.kind not in ('misc', 'wait')]
    p.add(code)
    p(f"s_or_b64 vcc, vcc, {sr(sBAD, 2)}\ns_cbranch_scc1 L_slow")

SRD_CTX = 4
sBAD = 70
LMAX = (127 + 60) << 23
def ctx_setup(p):
    p(f"s_lshl_b32 s3, s{sH}, 15\ns_lshl_b32 s31, s{sW}, 10\ns_add_u32 s3, s3, s31")
    srd(p, SRD_CTX, PTR['WS'], 3, WS_CTX, 15 * MB + 32768 - 3072)
def ctx_store(p, qts, T=(192, 224)):
    p(f"s_lshl_b32 s87, s{sJ}, 20")
    if qts[0] >= 2: p(f"s_xor_b32 s87, s87, 0x{XH * MB:x}")
    k = 0
    for i, qt in enumerate(qts):
        p(f"v_accvgpr_read_b32 v{14+i}, a{L_(qt)}\nv_rcp_f32 v{12 if i else 20}, v{14+i}")
        for s in range(4):
            t = T[k % len(T)]; k += 1
            for e in range(8): p(f"v_accvgpr_read_b32 v{t+e}, a{O_(qt, 2*s) + e}")
            for e in range(8): p(f"v_mul_f32 v{t+e}, v{t+e}, v{12 if i else 20}")
            for e in range(4): p(f"v_cvt_pk_bf16_f32 v{t+8+e}, v{t+2*e}, v{t+2*e+1}")
            p(f"s_add_u32 s86, s87, 0x{s * 8192 + (qt & 1) * 4096:x}")
            p(f"buffer_store_dwordx4 {vr(t+8)}, v{vL16}, {sr(SRD_CTX)}, s86 offen sc1 ;! w=CST")
    p(f"v_add_f32 v22, v14, v15\nv_cmp_ngt_f32 vcc, 0x{LMAX:x}, v22")
    if qts[0] < 2: p(f"s_mov_b64 {sr(sBAD, 2)}, vcc")

def slow_path(p, redo):
    sQT, sNT, sT, sPASS, sO = 72, 73, 68, 69, 66
    S, P, CI, V, T = 96, 112, 24, 32, 192
    p(f"""
    L_slow:
    s_waitcnt vmcnt(0) lgkmcnt(0)
    s_mov_b32 s{sQT}, 0
    L_slow_qt:
    s_lshl_b32 s3, s{sJ}, 1
    s_xor_b32 s31, s3, {2 * XH}
    s_cmp_lt_u32 s{sQT}, 2
    s_cselect_b32 s{sNT}, s3, s31
    s_and_b32 s3, s{sQT}, 1
    s_add_u32 s{sNT}, s{sNT}, s3
    s_mov_b32 s{sPASS}, 0
    v_mov_b32 v14, v{vNEG}
    v_mov_b32 v15, 0
    """)
    for r in range(32): p(f"v_accvgpr_write_b32 a{r}, 0")
    for r in range(4): p(f"v_accvgpr_write_b32 a{L_(0)+r}, 0")
    p("L_slow_pass:")
    for r in range(16): p(f"v_mov_b32 v{CI+r}, v15")
    p(f"s_mov_b32 s{sT}, 0\nL_slow_tile:\ns_lshl_b32 s3, s{sT}, 15")
    for kt in range(4):
        for ds in range(4): p(f"buffer_load_dwordx4 {ar(KF(kt, ds))}, v{vL16}, {sr(SRD_KVL)}, s3 offen offset:{ds * 1024} sc1")
        p("s_add_u32 s3, s3, 4096")
    for q in range(16):
        p(f"buffer_load_dwordx4 {ar(V + 4*q)}, v{vL16}, {sr(SRD_KVL)}, s3 offen offset:{(q & 3) * 1024} sc1")
        if q & 3 == 3: p("s_add_u32 s3, s3, 4096")
    p(f"s_cmp_lg_u32 s{sT}, s{sNT}\ns_cbranch_scc1 L_slow_nomask")
    for x in mask_update(CI, lambda kt, r: CI + 4 * kt + r): p(x)
    p("L_slow_nomask:\ns_waitcnt vmcnt(0)")
    for kt in range(4):
        for ds in range(4): p(mfma(vr(S + 4*kt), ar(KF(kt, ds)), vr(128 + 4*ds), vr(CI + 4*kt) if ds == 0 else vr(S + 4*kt)))
    p(f"s_cmp_lg_u32 s{sPASS}, 0\ns_cbranch_scc1 L_slow_p2")
    for r in range(0, 16, 2): p(f"v_max3_f32 v14, v14, v{S+r}, v{S+r+1}")
    p("s_branch L_slow_next\nL_slow_p2:")
    for r in range(16): p(f"v_exp_f32 v{S+r}, v{S+r}")
    for r in range(8): p(f"v_cvt_pk_bf16_f32 v{P+r}, v{S+2*r}, v{S+2*r+1}")
    for ks in range(2): p(mfma(ar(L_(0)), ar(ONES), vr(P + 4*ks), ar(L_(0))))
    for dt in range(8):
        for ks in range(2): p(mfma(ar(4*dt), ar(V + 8*dt + 4*ks), vr(P + 4*ks), ar(4*dt)))
    p(f"""
    L_slow_next:
    s_add_u32 s{sT}, s{sT}, 1
    s_cmp_le_u32 s{sT}, s{sNT}
    s_cbranch_scc1 L_slow_tile
    s_cmp_lg_u32 s{sPASS}, 0
    s_cbranch_scc1 L_slow_store
    v_mov_b32 v16, v14
    v_permlane32_swap_b32 v16, v14
    v_max_f32 v14, v14, v16
    v_mov_b32 v16, v14
    v_permlane16_swap_b32 v16, v14
    v_max_f32 v14, v14, v16
    v_sub_f32 v15, 0, v14
    s_mov_b32 s{sPASS}, 1
    s_branch L_slow_pass
    L_slow_store:
    s_lshl_b32 s3, s{sJ}, 20
    s_xor_b32 s31, s3, 0x{XH * MB:x}
    s_cmp_lt_u32 s{sQT}, 2
    s_cselect_b32 s{sO}, s3, s31
    s_and_b32 s3, s{sQT}, 1
    s_lshl_b32 s3, s3, 12
    s_add_u32 s{sO}, s{sO}, s3
    v_accvgpr_read_b32 v16, a{L_(0)}
    v_rcp_f32 v16, v16
    """)
    for s in range(4):
        for e in range(8): p(f"v_accvgpr_read_b32 v{T+e}, a{8*s + e}")
        for e in range(8): p(f"v_mul_f32 v{T+e}, v{T+e}, v16")
        for e in range(4): p(f"v_cvt_pk_bf16_f32 v{T+8+e}, v{T+2*e}, v{T+2*e+1}")
        p(f"buffer_store_dwordx4 {vr(T+8)}, v{vL16}, {sr(SRD_CTX)}, s{sO} offen sc1\ns_add_u32 s{sO}, s{sO}, 8192")
    for r in range(48): p(f"v_mov_b32 v{128+r}, v{144+r}")
    p(f"""
    s_add_u32 s{sQT}, s{sQT}, 1
    s_cmp_lt_u32 s{sQT}, 4
    s_cbranch_scc1 L_slow_qt
    s_waitcnt vmcnt(0)
    """)
    redo(p)
    p(f"s_mov_b32 s{SRD_CTX+2}, 0\ns_branch L_slow_ret")
```

```python
from asm import *
NAME = "gated_mix__compressed_kv_cla__ssm_conv_h3__prompt"
PTR = dict(X=64, CKV=66, WQ=68, WUK=70, WUV=72, WO=74, BQ=76, BK=78, BV=80, SHK=82, SSMK=84, SSMD=86, GW=88, OUT=90, DBG=92, WS=94)
MB = 1 << 20
WS_KV, WS_CTX, WS_UT, WS_Y2, WS_G, WS_DUMP = 0, 32*MB, 48*MB, 56*MB, 60*MB, 64*MB
import os
WS_FLAG = 61 * MB
FB = 11
KFLAG = 524288
WS_PART = 64 * MB
MAP = int(os.environ.get('MAP', '0'))
XH = 14 if MAP == 2 else 15
UP8 = 1
SNAKE = os.environ.get('SNAKE', '1') == '1'
def snake(lst, odd): return list(lst)[::-1] if (odd & 1) and SNAKE else list(lst)
def vr(b, n=4): return f"v[{b}:{b+n-1}]" if n > 1 else f"v{b}"
def ar(b, n=4): return f"a[{b}:{b+n-1}]" if n > 1 else f"a{b}"
def sr(b, n=4): return f"s[{b}:{b+n-1}]" if n > 1 else f"s{b}"
def mfma(d, a, b, c): return f"v_mfma_f32_16x16x32_bf16 {d}, {a}, {b}, {c}"
def srd(p, dst, ptr, off_sgpr=None, off_imm=0, nrec=0):
    if off_sgpr is not None:
        p(f"s_add_u32 s{dst}, s{ptr}, s{off_sgpr}\ns_addc_u32 s{dst+1}, s{ptr+1}, 0")
        if off_imm: p(f"s_add_u32 s{dst}, s{dst}, 0x{off_imm:x}\ns_addc_u32 s{dst+1}, s{dst+1}, 0")
    elif off_imm:
        p(f"s_add_u32 s{dst}, s{ptr}, 0x{off_imm:x}\ns_addc_u32 s{dst+1}, s{ptr+1}, 0")
    else:
        p(f"s_mov_b32 s{dst}, s{ptr}\ns_mov_b32 s{dst+1}, s{ptr+1}")
    if isinstance(nrec, str): p(f"s_mov_b32 s{dst+2}, {nrec}")
    else: p(f"s_mov_b32 s{dst+2}, 0x{nrec:x}")
    p(f"s_mov_b32 s{dst+3}, 0x20000")

HEADER = open(__file__.rsplit('/', 1)[0] + "/../" + NAME + ".s.ref").read().split("; Override launch")[0]
def kernel_text(name, prog):
    eo = int(os.environ.get('EOFF', '0'))
    pad = f".fill {eo // 4}, 4, 0xbf810000\n" if eo else ""
    return f"""{pad}.globl {name}
.p2align 8
.type {name},@function
{name}:
{prog.text()}"""
def descriptor(name, vgpr=512, accum=256):
    return f""".amdhsa_kernel {name}
  .amdhsa_next_free_vgpr {vgpr}
  .amdhsa_next_free_sgpr 102
  .amdhsa_accum_offset {accum}
  .amdhsa_group_segment_fixed_size 0
  .amdhsa_kernarg_size 128
  .amdhsa_user_sgpr_count 2
  .amdhsa_user_sgpr_kernarg_segment_ptr 1
  .amdhsa_system_sgpr_workgroup_id_x 1
  .amdhsa_float_denorm_mode_32 3
.end_amdhsa_kernel
"""
def module(kernels):
    s = HEADER
    if len(kernels) == 1 and kernels[0][0] == NAME + "_kernel":
        _, _, g, b, l, _, _ = kernels[0]
        s += f"; @launch grid=({g},1,1) block=({b},1,1) lds={l}\n"
    else:
        for n, _, g, b, l, _, _ in kernels:
            s += f"; @launch kernel={n} grid=({g},1,1) block=({b},1,1) lds={l}\n"
    s += '.amdgcn_target "amdgcn-amd-amdhsa--gfx950"\n.text\n'
    for k in kernels: s += kernel_text(k[0], k[1])
    s += '.section .rodata,"a"\n'
    for k in kernels: s += ".p2align 6\n" + descriptor(k[0], k[5], k[6])
    return s

class Stamps:
    def __init__(self, on): self.on = on; self.n = 0
    def text(self):
        if not self.on: return ""
        k = self.n; self.n += 1
        t = f"{'s_memrealtime' if os.environ.get('RT') else 's_memtime'} s[0:1]\ns_waitcnt lgkmcnt(0)\nv_writelane_b32 v23, s0, {k}"
        if k == 0: t += "\nv_writelane_b32 v23, s100, 13"
        return t
    def want(self, tag): return self.on and self.n < 12 and (self.n == 0 or any(c in os.environ.get('STAMP', '') for c in tag))
    def __call__(self, p, tag='1g'):
        if self.want(tag): p(self.text())
    def fill(self, fl, g, tag):
        if self.want(tag): fl.append(F(self.text(), g, g, cls='B'))
    def finish(self, p):
        if not self.on: return
        p(self.text())
        p(f"s_memrealtime s[0:1]\ns_waitcnt lgkmcnt(0)\nv_writelane_b32 v23, s0, 14\ns_mov_b32 s0, {self.n}\nv_writelane_b32 v23, s0, 15")
        p("s_lshl_b32 s3, s2, 8")
        srd(p, 4, PTR['WS'], 3, WS_DUMP + 32 * MB, 256)
        p("""v_lshrrev_b32 v14, 6, v0
        v_and_b32 v15, 63, v0
        v_lshlrev_b32 v14, 6, v14
        v_lshl_add_u32 v14, v15, 2, v14
        v_mov_b32 v16, 0x10000
        v_cmp_gt_u32 vcc, 16, v15
        v_cndmask_b32 v14, v16, v14, vcc
        buffer_store_dword v23, v14, s[4:7], 0 offen
        s_waitcnt vmcnt(0)""")
        if os.environ.get('STAMP') == 'L':
            p("s_lshl_b32 s3, s2, 10"); srd(p, 4, PTR['WS'], 3, WS_DUMP + 33 * MB, 1024)
            p("v_lshlrev_b32 v14, 2, v0\nbuffer_store_dword v23, v14, s[4:7], 0 offen\ns_waitcnt vmcnt(0)")
```

```python
import sys
from asm import I
def est(lines, show=False):
    gaps = []; cur = None
    for l in lines:
        ins = I(l)
        if ins.kind == 'mfma': cur = [I("s_nop 0")] if ins.op.startswith('v_smfmac') else []; gaps.append(cur)
        elif cur is not None: cur.append(ins)
    tot = 0; pat = []
    for g in gaps:
        t = 4; first = True; prevv = False; s = ''
        for k, i in enumerate(g):
            if i.kind in ('salu', 'wait', 'misc', 'branch'): t += 4; s += 'w' if i.kind == 'wait' else 's'
            elif i.kind == 'nop': t += 4 * i.states(); s += 'n'
            else:
                t = max(t, 8)
                if i.kind == 'valu': t += 8 if i.trans else 4; prevv = True; s += 'E' if i.trans else 'V'
                elif i.kind in ('dsr', 'dsw'):
                    if prevv: t += 4
                    t += 4; s += 'D'
                    if k == len(g) - 1: t += 4
                else:
                    if prevv: t += 4
                    t += 8; s += 'G'
        c = max(16, t); tot += c; pat.append((s or '-') + (f"[{c}]" if c > 16 else ''))
    if show: print(' '.join(pat))
    return len(gaps), tot
if __name__ == "__main__":
    L = [l.strip() for l in open(sys.argv[1])]
    a, b = L.index(sys.argv[2] + ':'), L.index(sys.argv[3] + ':')
    body = [l for l in L[a:b] if l and not l.endswith(':') and not l.startswith('.')]
    print(est(body, True))
```

```python
from common import *
import math, os
sW, sH, sJ = 28, 29, 30
SRD_A, SRD_W0, SRD_W1, SRD_KVS, SRD_FL, SRD_KVL = 4, 8, 12, 16, 20, 24
SRD_DBG = 4
vP8 = 7
SRD_X, SRD_WQ = 56, 60
sCc, sXc, sWc = 32, 40, 48
sW8K, sW4K = 96, 97
vLANE, vDMA, vL16, vKRD, vVRD = 1, 2, 3, 4, 5
vATOM, vONE, vPOLL, vKST, vVST, vNEG = 8, 9, 10, 11, 12, 13
vCpat, vXpat, vWpat, vCrd, vXrd, vWrdKV, vWrdQ = 24, 26, 28, 30, 34, 38, 42
ASLOT = [0, 32768, 131072]
WBASE = 65536

def setup(p):
    if os.environ.get('STAMP'): p("s_memrealtime s[100:101]")
    p(f"""
    s_cmp_ge_u32 s2, 256
    s_cbranch_scc1 L_end
    s_load_dwordx16 s[64:79], s[0:1], 0
    s_load_dwordx16 s[80:95], s[0:1], 64
    """)
    if CT0 == 0: first_touch(p)
    p(f"""
    v_lshrrev_b32 v14, 6, v0
    v_and_b32 v{vLANE}, 63, v0
    v_readfirstlane_b32 s{sW}, v14
    """)
    if MAP:
        p(f"""
        s_and_b32 s3, s2, 6
        s_lshr_b32 s31, s2, 5
        s_lshl_b32 s{sH}, s3, 2
        s_add_u32 s{sH}, s{sH}, s31
        {'s_andn2_b32 s3, 1, s2' if MAP == 2 else 's_and_b32 s3, s2, 0x19'}
        s_bcnt1_i32_b32 s3, s3
        s_and_b32 s3, s3, 1
        s_lshr_b32 s{sJ}, s2, 2
        s_and_b32 s{sJ}, s{sJ}, 6
        s_or_b32 s{sJ}, s{sJ}, s3
        """)
    else:
        p(f"""
        s_and_b32 s3, s2, 7
        s_lshr_b32 s31, s2, 6
        s_lshl_b32 s{sH}, s3, 2
        s_add_u32 s{sH}, s{sH}, s31
        s_lshr_b32 s{sJ}, s2, 3
        s_and_b32 s{sJ}, s{sJ}, 7
        """)
    p(f"""
    s_lshl_b32 s{sW8K}, s{sW}, 13
    s_lshl_b32 s{sW4K}, s{sW}, 12
    """)
CT0 = int(os.environ.get('CT0', '0'))
def first_touch(p):
    for x in code_touch("pg0" if HOP else "code0", "codeend", 20, 127): emit(p, x.replace("s[0:1]", "s[52:53]").replace("s0", "s52").replace("s1", "s53").replace("s3", "s54"))
    p("L_code0:")

def code_touch(a, b, va, vd, n28=False):
    n = len(code_touch.used); code_touch.used.add(n)
    k = f"NL{28 if n28 else 32}_{a}__{b}_"
    return [*([f"s_lshr_b32 s3, s2, 6", "s_mul_i32 s3, s3, 7", f"s_add_u32 s3, s3, s{sJ}"] if n28 else [f"s_lshr_b32 s3, s2, 3"]), f"s_mul_i32 s3, s3, {k}PER",
            f"v_lshrrev_b32 v{va}, 3, v0", f"v_min_u32 v{va}, {k}PM1, v{va}", f"v_add_u32 v{va}, s3, v{va}", f"v_min_u32 v{va}, {k}MAX, v{va}", f"v_lshlrev_b32 v{va}, 7, v{va}",
            f"s_getpc_b64 s[0:1]\ns_nop 0 ;@L_pc{n}\ns_add_u32 s0, s0, L_{a}-L_pc{n}\ns_addc_u32 s1, s1, 0\nv_add_co_u32 v{va}, vcc, s0, v{va}\nv_mov_b32 v{va+1}, s1\nv_addc_co_u32 v{va+1}, vcc, 0, v{va+1}, vcc",
            f"global_load_dword v{vd}, v[{va}:{va+1}], off"]
code_touch.used = set()

def gemm_setup(p, st, w0, a0):
    rk, rq = int(os.environ.get('ROTK', '1')), int(os.environ.get('ROTQ', '1'))
    p(f"""
    v_lshrrev_b32 v16, 4, v{vLANE}
    v_and_b32 v17, 15, v{vLANE}
    v_lshlrev_b32 v18, 1, v16
    v_xor_b32 v18, v17, v18
    v_lshlrev_b32 v18, 4, v18
    v_lshl_add_u32 v{vWpat}, v16, 13, v18
    s_lshr_b32 s99, s2, {5 if MAP else 6}
    s_lshr_b32 s31, s2, 3
    s_add_u32 s99, s99, s31
    s_and_b32 s55, s99, {rk}
    s_lshl_b32 s98, s55, 19
    v_xor_b32 v{vWpat}, s98, v{vWpat}
    v_xor_b32 v{vWpat+1}, 0x80, v{vWpat}
    s_lshl_b32 s3, s{sH}, 8
    s_lshl_b32 s31, s{sW}, 17
    s_add_u32 s3, s3, s31
    """)
    for q in range(4): p(f"s_mov_b32 s{sWc+q}, 0x{q*4*8192 - q*1024:x}")
    q = Prog(); srd(q, SRD_W0, PTR['WUK'], 3, 0, (448+15)*8192 + 256)
    p.add(q.items[2:]); p(w0[0][0][0]); p("s_waitcnt lgkmcnt(0)"); p.add(q.items[:2])
    st(p)
    for _, x in w0: p(x)
    if CT0 == 1: first_touch(p)
    p(f"""
    v_lshrrev_b32 v14, 3, v{vLANE}
    v_and_b32 v15, 7, v{vLANE}
    v_xor_b32 v18, v15, v16
    v_lshlrev_b32 v18, 4, v18
    v_lshl_add_u32 v{vCpat}, v14, 10, v18
    s_lshl_b32 s98, s55, 7
    v_xor_b32 v{vCpat}, s98, v{vCpat}
    v_xor_b32 v{vCpat+1}, 64, v{vCpat}
    s_lshl_b32 s98, s{sJ}, 17
    s_lshr_b32 s31, s{sW}, 1
    s_lshl_b32 s31, s31, 16
    s_add_u32 s98, s98, s31
    s_and_b32 s31, s{sW}, 1
    s_lshl_b32 s31, s31, 20
    s_add_u32 s98, s98, s31
    """)
    srd(p, SRD_A, PTR['CKV'], 98, 0, 64*1024)
    for k, (pre, x) in enumerate(a0):
        for y in pre: p(y)
        p(f"s_mov_b32 s{sCc+k}, 0x{k*8192 - (k&3)*1024:x}\n{x}")
    if CT0 == 2: first_touch(p)
    srd(p, SRD_W1, PTR['WUV'], 3, 0, (448+15)*8192 + 256)
    p(f"""
    v_lshl_add_u32 v{vXpat}, v14, 11, v18
    s_and_b32 s99, s99, {rq & 1 if rq > 7 else rq}
    {f's_xor_b32 s98, s2, s{sJ};s_and_b32 s98, s98, 7;s_lshl_b32 s98, s98, 1;s_or_b32 s99, s99, s98'.replace(';', chr(10)) if rq > 7 else ''}
    s_lshl_b32 s98, s99, 7
    v_xor_b32 v{vXpat}, s98, v{vXpat}
    v_xor_b32 v{vXpat+1}, 64, v{vXpat}
    s_xor_b32 s99, s99, s55
    s_xor_b32 s99, s99, 7
    s_lshl_b32 s99, s99, 19
    v_lshlrev_b32 v{vL16}, 4, v{vLANE}
    v_add_u32 v{vDMA}, s{sW4K}, v{vL16}
    """)

def gemm_setup2(p):
    p(f"""
    v_lshrrev_b32 v18, 1, v17
    v_xor_b32 v18, v16, v18
    v_lshlrev_b32 v18, 4, v18
    v_lshl_add_u32 v18, v17, 7, v18
    s_and_b32 s31, s{sW}, 1
    s_lshl_b32 s31, s31, 14
    v_add_u32 v{vCrd}, s31, v18
    v_xor_b32 v{vCrd+1}, 64, v{vCrd}
    v_add_u32 v{vCrd+2}, 0x20000, v{vCrd}
    v_add_u32 v{vCrd+3}, 0x20000, v{vCrd+1}
    v_add_u32 v{vXrd}, s{sW8K}, v18
    v_xor_b32 v{vXrd+1}, 64, v{vXrd}
    v_add_u32 v{vXrd+2}, 0x20000, v{vXrd}
    v_add_u32 v{vXrd+3}, 0x20000, v{vXrd+1}
    """)
    p(f"""
    v_bfe_u32 v18, v{vLANE}, 2, 2
    v_and_b32 v19, 1, v16
    v_lshl_add_u32 v19, v19, 2, v18
    v_lshl_add_u32 v18, v16, 3, v18
    v_lshlrev_b32 v18, 8, v18
    v_lshl_add_u32 v18, v19, 5, v18
    v_and_b32 v19, 3, v{vLANE}
    v_lshl_add_u32 v18, v19, 3, v18
    v_add_u32 v{vWrdQ}, 0x{WBASE:x}, v18
    """)
    for ct in range(1, 8): p(f"v_xor_b32 v{vWrdQ+ct}, 0x{ct << 5:x}, v{vWrdQ}")
    p(f"s_lshr_b32 s31, s{sW}, 1\ns_lshl_b32 s31, s31, 7")
    for ct in range(4): p(f"v_xor_b32 v{vWrdKV+ct}, s31, v{vWrdQ+ct}")

def gemm_setup3(p):
    p(f"s_lshl_b32 s3, s{sH}, 8\ns_lshl_b32 s31, s{sW}, 17\ns_add_u32 s3, s3, s31")
    srd(p, SRD_WQ, PTR['WQ'], 3, 0, (960+15)*8192 + 256)
    srd(p, SRD_X, PTR['X'], None, 0, 2048*2048)
    p(f"""
    s_lshl_b32 s3, s{sJ}, 18
    s_lshl_b32 s31, s{sW}, 15
    s_add_u32 s{sXc}, s3, s31
    s_xor_b32 s3, s3, 0x{XH << 18:x}
    s_add_u32 s{sXc+4}, s3, s31
    """)
    for q in (1, 2, 3):
        d = (q >> 1) * 64 * 2048 + (q & 1) * 8 * 2048 - q * 1024
        p(f"s_add_u32 s{sXc+q}, s{sXc}, 0x{d:x}\ns_add_u32 s{sXc+4+q}, s{sXc+4}, 0x{d:x}")
    p(f"s_lshl_b32 s3, s{sH}, 20")
    srd(p, SRD_KVS, PTR['WS'], 3, WS_KV, MB)
    p(f"s_xor_b32 s31, s{sJ}, {XH}\ns_add_u32 s31, s31, 1\ns_lshl_b32 s31, s31, 16")
    srd(p, SRD_KVL, PTR['WS'], 3, WS_KV, "s31")
    srd(p, SRD_FL, PTR['WS'], None, WS_FLAG, 2 * KFLAG)
    p(f"""
    s_lshl_b32 s3, s{sJ}, 16
    s_and_b32 s31, s{sW}, 1
    s_lshl_b32 s31, s31, 15
    s_add_u32 s3, s3, s31
    s_lshr_b32 s31, s{sW}, 1
    s_lshl_b32 s98, s31, 11
    s_add_u32 s98, s98, s3
    v_add_u32 v{vKST}, s98, v{vL16}
    s_lshl_b32 s98, s31, 13
    s_add_u32 s98, s98, s3
    s_add_u32 s98, s98, 0x4000
    v_add_u32 v{vVST}, s98, v{vL16}
    v_lshlrev_b32 v{vATOM}, 20, v0
    s_lshl_b32 s3, s{sH}, 10
    s_add_u32 s3, s3, {KFLAG}
    v_lshlrev_b32 v{vP8}, 7, v15
    v_add_u32 v{vP8}, s3, v{vP8}
    v_mov_b32 v{vONE}, 1
    v_mov_b32 v{vNEG}, 0xff800000
    v_add_u32 v{vKRD}, 0x{WBASE:x}, v{vL16}
    v_mov_b32 v{vVRD}, v{vL16}
    """)

XF = os.environ.get('XF', '')
def dma_A(a):
    out = []
    slot = ASLOT[a % 3]
    s, pat, cst = (SRD_A, vCpat, sCc) if a < 8 else (SRD_X, vXpat, sXc)
    for q in range(8):
        pre = []
        if q == 0 and a not in (0, 8):
            st_ = a if a < 8 else a - 8
            pre += [f"v_xor_b32 v{pat+z}, 0x{(st_ ^ (st_ - 1)) * 128:x}, v{pat+z}" for z in range(2)]
        if q % 4 == 0: pre += [f"s_add_u32 m0, s{sW8K}, 0x{slot + (q >> 2) * 4096:x}"]
        out.append((pre, f"buffer_load_dwordx4 v{pat + (q & 1)}, {sr(s)}, s{cst+q} offen offset:{(q & 3) * 1024} {XF} lds ;! w=A{a}"))
    return out
def dma_W(g):
    out = []
    s = SRD_WQ if g >= 16 else (SRD_W1 if g & 1 else SRD_W0)
    for q in range(4):
        pre = []
        if q == 0:
            if g == 16: pre += [f"v_xor_b32 v{vWpat+z}, s99, v{vWpat+z}" for z in range(2)]
            elif g >= 16 or (g >= 2 and g % 2 == 0):
                st_ = g - 16 if g >= 16 else g // 2
                pre += [f"v_xor_b32 v{vWpat+z}, 0x{(st_ ^ (st_ - 1)) << 19:x}, v{vWpat+z}" for z in range(2)]
            pre += [f"s_add_u32 m0, s{sW4K}, 0x{WBASE + (g % 4) * 16384:x}"]
        out.append((pre, f"buffer_load_dwordx4 v{vWpat + (q >> 1)}, {sr(s)}, s{sWc+q} offen offset:{q * 1024} {XF} lds ;! w=W{g}"))
    return out
sKOFF, sVOFF, sKM0, sVM0, sCNT = 98, 99, 100, 101, 31
import os
STF = os.environ.get('STF', 'sc1').replace('+', ' ')
KVL_FLAGS = os.environ.get('KVF', 'sc1')
def dma_KV(isv, t):
    out = []
    for q in range(4):
        pre = []
        if q == 0:
            pre += [f"s_mov_b32 s{sKOFF}, 0x{t * 32768 + isv * 16384:x}",
                    f"s_add_u32 m0, s{sW4K}, 0x{(0 if isv else WBASE) + (t % 4) * 16384:x}"]
        out.append((pre, f"buffer_load_dwordx4 v{vDMA}, {sr(SRD_KVL)}, s{sKOFF} offen offset:{q * 1024} {KVL_FLAGS} lds"))
    return out
def emit_dma(p, lst):
    for pre, d in lst:
        for x in pre: p(x)
        p(d)

accK = lambda ct, i: 128 + 16 * i + 4 * ct
accV = lambda ct, i: 16 * i + 4 * ct
accQ = lambda qt, ct: 128 + 32 * qt + 4 * ct
cF = lambda i, ks: 128 + 8 * i + 4 * ks
wF = lambda n, ks: 192 + 8 * (n % 4) + 4 * ks
xF = lambda s, qt, ks: (224 if s % 2 == 0 else 160) + 8 * qt + 4 * ks
def rdA(dst, a, idx, ks):
    slot = ASLOT[a % 3]; base = vCrd if a < 8 else vXrd
    v = base + ks + (2 if slot >= 65536 else 0)
    tok = f" ;! w=RA{a}" + (f" r=A{a}" if a >= 8 else "")
    return f"ds_read_b128 {ar(dst)}, v{v} offset:{(slot & 65535) + idx * 2048}{tok}"
def rdW(n, g, ct, ks, hf):
    v = (vWrdKV if g < 16 else vWrdQ) + ct
    return f"ds_read_b64_tr_b16 {ar(wF(n, ks) + 2 * hf, 2)}, v{v} offset:{(g % 4) * 16384 + ks * 8192 + hf * 1024}"

SP = int(os.environ.get('SP', '4'))
class DmaChain:
    def __init__(self, fl): self.fl = fl; self.last = None; self.lastg = None
    def add(self, lst, lo, hi, after=(), sp=None):
        n = len(lst); res = []; sp = sp or SP
        for k, (pre, d) in enumerate(lst):
            h = hi - sp * (n - 1 - k)
            for x in pre:
                f = F(x, lo, h - 1, after=([self.last] if self.last else []) + list(after), lag=1, cls='V' if x.startswith('v_') else 'S', pr=-1); self.fl.append(f); self.last = f
            f = F(d, lo, h, after=([self.last] if self.last else []) + list(after), lag=1); self.fl.append(f); self.last = f; res.append(f)
            f.pr = -1
            if self.lastg: f.after2.append((self.lastg, sp))
            self.lastg = f
        return res

QS = int(os.environ.get('QS', '1'))
sSC = 83
HOP = int(os.environ.get('HOP', '2'))
HS = [[int(y) for y in x.split(':')] for x in os.environ.get('HS', '0:8,167:15,10188:20').split(',')]
def hop_session(k):
    t = "s_mov_b64 exec, 0\n" if HOP == 2 else ""
    for w in range(3): t += f"s_cmp_eq_u32 s{sW}, {w}\ns_cbranch_scc1 L_hr{k} ;hop{k}_{w}\n"
    t += f"s_branch L_hr{k} ;hop{k}_3\ns_nop 0 ;@L_hr{k}"
    return t + ("\ns_mov_b64 exec, -1" if HOP == 2 else "")
class Polls:
    def __init__(self): self.t = {}; self.ool = []
    def load(self, name):
        srd_, voff, soff, off, _, _, v = self.t[name]
        return f"buffer_load_dword v{v}, {voff}, {sr(srd_)}, {soff} {'offen ' if voff != 'off' else ''}offset:{off} sc1"
    def loop(self, name, tag=None):
        _, _, _, _, val, op, v = self.t[name]; tag = tag or name
        return f"""s_mov_b32 s0, 0
        s_nop 0 ;@L_{tag}_loop
        v_cmp_{op}_u32 vcc, {val}, v{v}
        s_cbranch_vccz L_{tag}_ok
        {f"s_sleep {os.environ['SLP']}" if os.environ.get('SLP') else ''}
        {self.load(name)}
        s_add_u32 s0, s0, 1
        s_cmp_lt_u32 s0, 0x200000
        s_waitcnt vmcnt(0)
        s_cbranch_scc1 L_{tag}_loop"""
    def inline(self, name): return f"HINT v{self.t[name][6]}\n" + self.loop(name) + f"\ns_nop 0 ;@L_{name}_ok"
    def check(self, name, tag=''):
        _, _, _, _, val, op, v = self.t[name]; t = name + tag
        self.ool.append(f"s_nop 0 ;@L_{t}_wait\n" + self.loop(name, t) + f"\ns_branch L_{t}_ok")
        return f"v_cmp_{op}_u32 vcc, {val}, v{v}\ns_cbranch_vccnz L_{t}_wait\ns_nop 0 ;@L_{t}_ok"
polls = Polls()
polls.t.update(clr=(SRD_DBG, "off", f"s{sKM0}", 0, 0, 'eq', vPOLL), kv=(SRD_FL, f"v{vP8}", "0", 0, 1, 'ne', vPOLL), late=(SRD_FL, f"v{vP8}", "0", 4, 1, 'ne', 21))
def emit(p, txt): p.add_sched([I(x) for x in txt.split('\n') if x.strip()])

def touch_fill(fl, vm, g, a, b, va, vd, st):
    ct = [x.replace('s3', f's{st}') for x in code_touch(a, b, va, vd)]
    prev = None
    for x in ct[:-2]:
        f = F(x, g - 30, g - 8, after=[prev] if prev else [], pr=-1); fl.append(f); prev = f
    prev = F(ct[-2], g - 30, g - 2, after=[prev], cls='B', pr=-1); fl.append(prev)
    vm.add([([], ct[-1])], g, g + 40, 2, after=[prev], margin=10)
def label_fill(fl, g, name): fl.append(F(f"s_nop 0 ;@L_{name}", g, g, cls='S'))

class VM:
    def __init__(self, fl): self.fl = fl; self.groups = []
    def add(self, lst, lo, key, cost, after=(), margin=40, stream=None):
        ops = []
        for pre, d in lst:
            ops.append(([F(x, cls='V' if x.startswith('v_') else 'S', after=list(after), pr=-1) for x in pre], F(d, after=list(after), pr=-1)))
        self.groups.append(dict(ops=ops, lo=lo, key=key, cost=cost, margin=margin, stream=stream, n=len(self.groups)))
        return [o[1] for o in ops]
    def emit(self, t0=0, minsp=3, show=False):
        G = list(self.groups); order = []; t = t0
        while G:
            head = [g for g in G if g['stream'] is None or not any(h['stream'] == g['stream'] and h['n'] < g['n'] for h in G)]
            av = [g for g in head if g['lo'] <= t] or [min(head, key=lambda g: g['lo'])]
            g = min(av, key=lambda g: (g['key'], g['n'])); G.remove(g)
            t = max(t, g['lo'])
            t = max(g['lo'], min(t, g['key'] - g['margin'] - minsp * len(g['ops'])))
            for o in g['ops']: order.append([o, t, g]); t += g['cost']
        latest = BIG
        for e in reversed(order):
            latest = min(latest - minsp, e[2]['key'] - e[2]['margin']); e.append(latest)
        last = lastg = None
        for (pre, f), t, g, lat in order:
            tt = max(g['lo'], min(int(t), lat))
            for x in pre:
                x.lo = max(g['lo'], tt - len(pre) - 2); x.hi = tt + 10
                if last: x.after.append(last)
                self.fl.append(x); last = x
            f.lo = tt; f.hi = tt + 12; f.must = g['key']
            if last: f.after.append(last)
            if lastg: f.after2.append((lastg, minsp))
            self.fl.append(f); last = lastg = f
        self.order = order
    def check(self, show=False):
        if show: print('; vm:', ' '.join(f"{e[0][1].gap}" for e in self.order))
        bad = [(e[0][1].gap, e[2]['key'], e[0][1].ins[-1].text) for e in self.order if e[0][1].gap >= e[2]['key']]
        assert not bad, bad[:3]
        print('; vm min lead', min((e[2]['key'] - e[0][1].gap, e[0][1].gap, e[0][1].ins[-1].text[:60]) for e in self.order))

def gemm_stream(p, st, hook=None, endhook=None):
    M, fl = [], []
    wt = []
    FW = int(os.environ.get('FW', '0'))
    cuse = {}; lastK = {}; firstQ = {}; gemm_stream.lastQ = {}
    for u in range(16):
        s, isv = u >> 1, u & 1
        def kvpass(n, ct, rows):
            for pos, i in enumerate(rows):
                for z, ks in enumerate(snake(range(2), pos)):
                    first = s == 0 and z == 0
                    cuse.setdefault((s, i, ks), []).append(len(M))
                    if not isv: d = vr(accK(ct, i)); lastK[accK(ct, i)] = len(M); M.append(mfma(d, ar(wF(n, ks)), ar(cF(i, ks)), '0' if first else d))
                    else: d = ar(accV(ct, i)); M.append(mfma(d, ar(cF(i, ks)), ar(wF(n, ks)), '0' if first else d))
        if u == 0 and FW:
            for ct in range(4): wt.append((0, ct, 8 * ct, 32 + 8 * ct + 7))
            for rows in ((0, 1, 4, 5), (2, 3, 6, 7)):
                for ct in range(4): kvpass(ct, ct, snake(rows, ct))
            continue
        for ct in range(4):
            n = len(wt); wt.append((u, ct, len(M), len(M) + 15))
            kvpass(n, ct, snake(range(8), ct + s if os.environ.get('SN4', '1') == '1' else (ct if not isv else (0, 1, 1, 0)[ct])))
    for s in range(16):
        for ct in range(8):
            n = len(wt); wt.append((16 + s, ct, len(M), len(M) + 7))
            for pos, qt in enumerate(snake(range(4), ct)):
                for z, ks in enumerate(snake(range(2), pos)):
                    firstQ.setdefault(accQ(qt, ct), len(M)); gemm_stream.lastQ[accQ(qt, ct)] = len(M)
                    d = vr(accQ(qt, ct)); M.append(mfma(d, ar(wF(n, ks)), ar(xF(s, qt, ks)), '0' if s == 0 and z == 0 else d))
    bar = {}
    BP = 40
    SIG_U = int(os.environ.get('SIG', '25'))
    NPRE_W = int(os.environ.get('NPREW', '3')); KOFF = int(os.environ.get('KOFF', '30'))
    for u in range(32):
        need = [f"W{u+1}"] if u < 31 else ["K0"]
        if u < 15 and u & 1: need.append(f"A{(u + 1) >> 1}")
        if u < 16 and not u & 1: need.append(f"RA{u >> 1}")
        if u >= 29: need.append(f"RA{u - 8}")
        if u == SIG_U: need += ["ST"] + (["PREP"] if hook else [])
        bar[u] = F(f"s_barrier", 64 * u + BP, 64 * u + BP, cls='B'); fl.append(bar[u])
    for n in range(2, len(wt)):
        g, ct, g0, g1 = wt[n]
        lo = wt[n - 4][3] + 1 if n >= 4 else 0
        aft = [bar[g - 1]] if g >= 1 else []
        lo = max(lo, g0 - 26)
        for k, (ks, hf) in enumerate([(0, 0), (0, 1), (1, 0), (1, 1)]):
            fl.append(F(rdW(n, g, ct, ks, hf), lo, g0 - 10 + k, after=aft))
    if FW:
        g0 = int(os.environ.get('FWB', '20'))
        b0 = F("s_barrier ;! r=A0", g0, g0, cls='B'); fl.append(b0)
        for k, i in enumerate((2, 3, 6, 7)):
            for ks in range(2): fl.append(F(rdA(cF(i, ks), 0, i, ks), g0 + 1, g0 + 2 + 2 * k + ks, after=[b0], pr=-2))
    for s in range(1, 8):
        for i in range(8):
            for ks in range(2):
                fl.append(F(rdA(cF(i, ks), s, i, ks), cuse[(s - 1, i, ks)][-1], cuse[(s, i, ks)][0] - 8, after=[bar[2 * s - 1]]))
    xr = {}
    for s in range(16):
        base = 64 * (15 + s)
        xr[s] = []
        for qt in range(4):
            for ks in range(2):
                k = 2 * qt + ks
                f = F(rdA(xF(s, qt, ks), 8 + s, qt, ks), base + 2 + 4 * k, base + 24 + 4 * k); fl.append(f); xr[s].append(f)
    kcv = {}
    ksc = F(f"s_mov_b32 s{sSC}, {f32hex(QSCALE)}", 64 * 12, 64 * 13); fl.append(ksc)
    for i in range(8):
        for a in range(2):
            f_ = 2 * i + a; kcv[f_] = []
            for h in range(2):
                src = accK(2 * a + h, i)
                for z in range(2):
                    lastw = lastK[src]; ml = []
                    if QS and a == 1:
                        ml = [F(f"v_mul_f32 v{r}, s{sSC}, v{r}", lastw + 6, firstQ[src] - 3, after=[ksc]) for r in (src + 2 * z, src + 2 * z + 1)]; fl += ml
                    f = F(f"v_cvt_pk_bf16_f32 v{64 + 4 * f_ + 2 * h + z}, v{src + 2 * z}, v{src + 2 * z + 1}", lastw + 6, firstQ[src] - 1, after=ml)
                    fl.append(f); kcv[f_].append(f)
                    for x in ml + [f]: x.slack = int(os.environ.get('KSL', '40'))
    vm = VM(fl)
    E = lambda k, d: float(os.environ.get(k, d))
    CH, CM, CS = E('CH', '7'), E('CM', '4.7'), E('CS', '6')
    bg = lambda u: 64 * u + BP
    S0, S1 = 64 * 15 + 24, bg(SIG_U) - 50
    skey = lambda z: int(S0 + 60 + (S1 - S0 - 20) * (z + 1) / 16)
    def kop(f_, tok):
        i, a = f_ >> 1, f_ & 1
        return ([f"s_mov_b32 s3, 0x{(i >> 2) * 0x80000 + (i & 3) * 4096:x}"], f"buffer_store_dwordx4 {vr(64 + 4 * f_)}, v{vKST}, {sr(SRD_KVS)}, s3 offen offset:{a * 1024} {STF} ;! w={tok}")
    def vop(f_, tok):
        ct, b = (f_ >> 1) & 3, (f_ >> 3) * 2 + (f_ & 1)
        return ([f"s_mov_b32 s3, 0x{(b >> 1) * 0x80000 + (ct >> 1) * 4096:x}"], f"buffer_store_dwordx4 {vr(64 + 4 * (f_ & 7))}, v{vVST}, {sr(SRD_KVS)}, s3 offen offset:{(ct & 1) * 2048 + (b & 1) * 1024} {STF} ;! w={tok}")
    free = {}
    for f_ in range(8): free[f_] = vm.add([kop(f_, 'ST')], skey(f_) - 60, skey(f_) + KOFF, CS, after=kcv[f_], stream='st', margin=KOFF + 20)[0]
    tmp_last = {}; zero_after = {}; vcv = {}
    kk = 0
    for f_ in (0, 1, 2, 3, 8, 4, 9, 5, 10, 6, 11, 7, 12, 13, 14, 15):
        ct, b = (f_ >> 1) & 3, (f_ >> 3) * 2 + (f_ & 1)
        cv = []
        if f_ < 8: hi = skey(8 + f_) - 64; lo = max(1030, hi - int(E('VLO', '200')))
        else: lo = 1030; hi = skey(f_ + 4) - 80 if f_ < 12 else skey(15) + 30 * (f_ - 11)
        for h in range(2):
            for z in range(2):
                k = 4 * f_ + 2 * h + z; t = 50 + 2 * (kk % 7); kk += 1; src = accV(ct, 2 * b + h) + 2 * z
                aft = [tmp_last[t]] if t in tmp_last else []
                r0 = F(f"v_accvgpr_read_b32 v{t}, a{src}", lo, hi - 4, after=aft); r1 = F(f"v_accvgpr_read_b32 v{t+1}, a{src+1}", lo, hi - 4, after=aft)
                c = F(f"v_cvt_pk_bf16_f32 v{64 + (k & 31)}, v{t}, v{t+1}", lo, hi - 2, after=[r0, r1, free[f_ & 7]]); tmp_last[t] = c
                fl.extend([r0, r1, c]); cv.append(c); zero_after[src] = r0; zero_after[src + 1] = r1
        vcv[f_] = cv
        if f_ < 8: free[f_] = vm.add([vop(f_, 'ST')], skey(8 + f_) - 60, skey(8 + f_) + KOFF, CS, after=cv, stream='st', margin=KOFF + 20)[0]
    late = []
    for m in range(4): late += [(vop(8 + m, 'SL'), vcv[8 + m]), (vop(12 + m, 'SL'), vcv[12 + m]), (kop(8 + m, 'SL'), []), (kop(12 + m, 'SL'), [])]
    NL, L0, CL = int(E('NL', '8')), int(E('L0', '1850')), E('CL', '16')
    for z in range(NL): vm.add([late[z][0]], int(L0 + z * (2040 - L0) / NL), 2090 + z, 3, after=late[z][1], stream='sl', margin=45)
    gemm_stream.late = [x[0] for x in late[NL:]]
    for g in range(NPRE_W, 32):
        vm.add(dma_W(g), bg(g - 3) + 1 if g >= 4 else 0, bg(g - 1), CH if g < int(E('NCW', '16')) else CM, after=[bar[g - 3]] if g >= 4 else [], stream='W')
    for a in range(1, 24):
        lst = dma_A(a)
        if a < 3: lo, aft = 0, []
        elif a < 11: lo, aft = bg(2 * (a - 3)) + 1, [bar[2 * (a - 3)]]
        else:
            lo, aft = 64 * (a + 4) + 62, xr[a - 11]
            lst[0] = (lst[0][0], lst[0][1] + f" r=RA{a - 3}")
        key = bg(2 * a - 1) if a < 8 else 64 * (7 + a) + 2
        for h in range(2): vm.add(lst[4*h:4*h+4], lo, key, CH if a < int(E('NCA', '8')) else CM, after=aft, stream='A')
    lastA = [g for g in vm.groups if 'w=A7' in g['ops'][-1][1].ins[-1].text][-1]['ops'][-1][1]
    vm.add([([f"s_mov_b32 s{SRD_DBG}, s{PTR['DBG']}", f"s_mov_b32 s{SRD_DBG+1}, s{PTR['DBG']+1}", f"s_mov_b32 s{SRD_DBG+2}, 256", f"s_lshl_b32 s{sKM0}, s{sH}, 2"], polls.load("clr"))], 64 * 13, 64 * 15, 1, after=[lastA], margin=60)
    clr = F(polls.check("clr"), 64 * 15 + 1, 64 * 15 + 1, cls='B'); fl.append(clr)
    vm.add([([f"s_lshl_b32 s3, s{sH}, 3", f"s_add_u32 s3, s3, s{sJ}", "s_lshl_b32 s3, s3, 7", f"s_add_u32 s3, s3, {KFLAG}"], f"buffer_store_dword v{vONE}, v{vATOM}, {sr(SRD_FL)}, s3 offen sc1")], bg(SIG_U) + 1, bg(SIG_U) + 30, 1, after=[bar[SIG_U], clr], margin=20)
    vm.add([([], polls.load("kv"))], bg(29) - 70, bg(29) - 2, 1, margin=50)
    kvc = F(polls.check("kv"), bg(29) - 2, bg(29) - 2, cls='B'); fl.append(kvc)
    vm.add([([f"s_add_u32 s3, s{sKM0}, 128", f"s_cmp_eq_u32 s{sJ}, 7\ns_cselect_b32 s3, s3, 0x1000"], f"buffer_store_dword v{vONE}, v{vATOM}, {sr(SRD_DBG)}, s3 offen sc1")], bg(29) + 1, 64 * 30 - 1, 1, after=[kvc], margin=4)
    vm.add(dma_KV(0, 0), bg(29) + 1, bg(31), CM, after=[bar[29]], stream='KV')
    vm.add(dma_KV(1, 0), bg(29) + 1, 2060, CM, after=[bar[29]], stream='KV')
    vm.add(dma_KV(0, 1), bg(30) + 1, 2061, CM, after=[bar[30]], stream='KV')
    vm.add(dma_KV(0, 2) + dma_KV(1, 1), bg(31) + 1, 2100, 3, after=[bar[31]], stream='KV')
    vm.kcv = kcv; vm.bar = bar
    q = Prog(); gemm_setup3(q); hook(-1, q, None, None)
    prev = None; k = 0
    its = q.items
    while k < len(its):
        t = its[k].text
        if k + 1 < len(its) and its[k + 1].op == 's_addc_u32': t += "\n" + its[k + 1].text; k += 1
        f = F(t, 0, int(E('SU3', '73')), pr=-1, cls='V' if t.startswith('v_') else 'S')
        if prev: f.after2.append((prev, 0))
        fl.append(f); prev = f; k += 1
    vm.setup = prev
    if hook: hook(0, vm, fl, CH)
    for k, (g, a, b) in enumerate(((int(E('CTA', '0')), 'gq0', 'gq1'), (int(E('CTB', '0')), 'gq1', 'attn'))):
        if g: touch_fill(fl, vm, g, a, b, 18 if k == 0 else 20, 17, 31)
    if E('CT2', '0'): touch_fill(fl, vm, int(E('CT2', '0')), 'attn', 'after2', 20, 17, 31)
    if HOP:
        for k in range(1, len(HS)):
            if HS[k][0] < 10000: fl.append(F(hop_session(k), HS[k][0], HS[k][0], cls='B'))
    label_fill(fl, 64 * 14, 'gq0'); label_fill(fl, 64 * 23, 'gq1')
    vm.emit(t0=int(E('T0', '20')))
    zr = F(f"v_mov_b32 v19, 0x30000", 64 * 17, 64 * 18); fl.append(zr)
    for r in range(0, 144, 4):
        fl.append(F(f"ds_read_b128 {ar(r)}, v19", 64 * 18, 64 * 31 - 20, after=[zr] + [zero_after[x] for x in range(r, r + 4) if x < 128], pr=5000))
    if E('ON4', '1'):
        prev = []
        for k, x in enumerate((f"v_and_b32 v14, 3, v{vLANE}", "v_min_u32 v14, 1, v14", "v_subrev_u32 v14, 1, v14", "v_and_b32 v14, 0x3f803f80, v14")):
            prev = [F(x, 64 * 19, 64 * 21 - 8 + k, after=prev)]; fl += prev
    else: fl.append(F(f"v_mov_b32 v14, 0x3f803f80", 64 * 20, 64 * 21 - 2))
    for r in range(144, 148): fl.append(F(f"v_accvgpr_write_b32 a{r}, v14", 64 * 21, 64 * 29))
    if endhook: endhook(fl, bar, vm)
    a0 = dma_A(0)
    if FW: a0 = [(pre, x.replace("w=A0", "w=A0a") if k < 4 else x) for k, (pre, x) in enumerate(a0)]
    gemm_setup(p, st, dma_W(0), a0)
    gemm_setup2(p)
    if HOP:
        p.note('''While the first tiles are on their way every wave visits the first instruction line of a few code pages (branches only, no memory
        instruction on that path): sequential instruction prefetch stops at page ends.''')
        emit(p, hop_session(0).rsplit('\n', 2 if HOP == 2 else 1)[0])
        p.label("L_pg0", 12)
        p("L_hr0:")
        if HOP == 2: p("s_mov_b64 exec, -1")
    for g in range(1, NPRE_W): emit_dma(p, dma_W(g))
    p("s_barrier ;! r=A0a,W0" if FW else "s_barrier ;! r=A0,W0")
    st(p)
    for u in [int(x) for x in os.environ.get('GU', '4,8,12,16,20,24,28').split(',')]: st.fill(fl, 64 * u - 1, '1g' if u == 16 else 'g')
    for ks in range(2):
        for hf in range(2): p(rdW(0, 0, 0, ks, hf))
    NF = 8 if FW else int(E('NF', '4'))
    for i in ((0, 1, 4, 5) if FW else range(8)):
        for ks in snake(range(2), i):
            if i < NF: p(rdA(cF(i, ks), 0, i, ks))
            else: fl.append(F(rdA(cF(i, ks), 0, i, ks), 0, cuse[(0, i, ks)][0] - 2 * NF, pr=-8))
    for k, (ks, hf) in enumerate(((0, 0), (0, 1), (1, 0), (1, 1))):
        if NF == 8: p(rdW(1, 0, 1, ks, hf))
        else: fl.append(F(rdW(1, 0, 1, ks, hf), 0, 16 - 2 * NF + k, pr=-7))
    code = schedule(M, fl, verbose="gemm", rate=E('RATE', '19') or None)
    vm.check(os.environ.get('V'))
    for ins in code:
        if os.environ.get('NOST') and 'w=ST' in ins.text: ins = I("s_nop 0 ;! w=ST")
        AB_ = os.environ.get('ABL', '')
        if 'w' in AB_ and (ins.kind == 'dsw'): ins = I("s_nop 0")
        if 'p' in AB_ and ins.op == 'ds_bpermute_b32': ins = I("s_nop 0")
        if 'v' in AB_ and ins.kind == 'valu' and ins.op.startswith(('v_fmac', 'v_and', 'v_lshlrev')) and any(104 <= int(r[1:]) < 123 for r in ins.writes): continue
        if 'u' in AB_ and ins.op == 'buffer_load_dwordx2': ins = I("s_nop 0")
        if 'g' in AB_ and ins.kind == 'vld' and 's77 offen' in ins.text: ins = I("s_nop 0")
        if 't' in AB_ and ins.op == 'global_load_dword': ins = I("s_nop 0")
        if 's' in AB_ and ins.op == 'buffer_store_dwordx4' and 'PREP' in ins.text: ins = I("s_nop 0")
        if os.environ.get('NODMA') and ins.kind == 'dma': ins = I("s_nop 0 ;!" + ins.text.split(';!')[1])
        if os.environ.get('NOBAR') and ins.op == 's_barrier': ins = I("s_nop 0 ;!" + ins.text.split(';!')[1])
        p.add_sched([ins])

QSCALE = math.log2(math.e) / math.sqrt(128.0)
import struct
def f32hex(x): return "0x%08x" % struct.unpack("<I", struct.pack("<f", x))[0]
```

```python
from k1 import *
SP_ = 52
sT0, sT1 = 76, 77
WK, KK, VV = 50, 58, 80
GG, XX = 104, 112
T8 = 96
vA, vB, vU, vQ, vZ, vPM = 18, 19, 20, 21, 22, 6
def setsrd(ptr, off, nrec):
    if off: return [f"s_add_u32 s{SP_}, s{ptr}, 0x{off:x}\ns_addc_u32 s{SP_+1}, s{ptr+1}, 0", f"s_mov_b32 s{SP_+2}, 0x{nrec:x}"]
    return [f"s_mov_b32 s{SP_}, s{ptr}", f"s_mov_b32 s{SP_+1}, s{ptr+1}", f"s_mov_b32 s{SP_+2}, 0x{nrec:x}"]
R = sr(SP_)
def setup_addr(p):
    p(f"""
    s_mov_b32 s{SP_}, s{PTR['X']}
    s_mov_b32 s{SP_+1}, s{PTR['X']+1}
    s_mov_b32 s{SP_+2}, 0x{4*MB:x}
    s_mov_b32 s{SP_+3}, 0x20000
    s_lshr_b32 s3, s2, 4
    s_lshl_b32 s3, s3, 18
    s_and_b32 s31, s2, 15
    s_lshl_b32 s31, s31, 7
    s_add_u32 s3, s3, s31
    v_lshrrev_b32 v{vZ}, 4, v0
    v_lshlrev_b32 v{vA}, 14, v{vZ}
    v_lshl_add_u32 v{vA}, v17, 3, v{vA}
    v_add_u32 v{vA}, s3, v{vA}
    s_lshl_b32 s31, s31, 2
    v_lshlrev_b32 v{vB}, 5, v17
    v_add_u32 v{vB}, s31, v{vB}
    s_lshl_b32 s31, s31, 9
    s_lshr_b32 s3, s2, 4
    s_lshl_b32 s3, s3, 9
    s_add_u32 s3, s3, s31
    s_lshl_b32 s31, s{sW}, 7
    s_add_u32 s3, s3, s31
    v_lshlrev_b32 v{vU}, 15, v14
    v_lshl_add_u32 v{vU}, v15, 4, v{vU}
    v_add_u32 v{vU}, s3, v{vU}
    v_bfe_u32 v{vQ}, v17, 3, 1
    v_lshl_add_u32 v{vQ}, v{vQ}, 2, v16
    v_xor_b32 v{vQ}, v{vQ}, v15
    v_lshl_add_u32 v{vPM}, v15, 3, v{vQ}
    v_lshlrev_b32 v{vPM}, 4, v{vPM}
    v_add_u32 v{vPM}, s{sW8K}, v{vPM}
    s_lshr_b32 s3, s2, 3
    s_lshl_b32 s3, s3, 18
    s_lshl_b32 s31, s{sW}, 16
    s_add_u32 s3, s3, s31
    s_and_b32 s31, s2, 7
    s_lshl_b32 s31, s31, 10
    s_add_u32 s3, s3, s31
    v_lshrrev_b32 v{vQ}, 5, v{vLANE}
    v_lshlrev_b32 v{vQ}, 13, v{vQ}
    v_bfe_u32 v{vZ}, v{vLANE}, 2, 3
    v_lshl_add_u32 v{vQ}, v{vZ}, 7, v{vQ}
    v_add_u32 v{vQ}, s3, v{vQ}
    v_xor_b32 v{vZ}, v14, v{vLANE}
    v_lshlrev_b32 v{vZ}, 4, v{vZ}
    v_add_u32 v{vZ}, s{sW8K}, v{vZ}
    s_mov_b32 s101, 0xffff0000
    s_lshl_b32 s3, s{sW}, 20
    v_add_u32 v15, s3, v{vL16}
    v_mov_b32 v{T8+4}, 0
    v_mov_b32 v{T8+5}, 0
    v_mov_b32 v{T8+6}, 0
    v_mov_b32 v{T8+7}, 0
    s_lshl_b32 s{sT1}, s2, 14
    s_add_u32 s{sT1}, s{sT1}, s{sW4K}
    """)
    for r in range(3): p(f"v_subrev_u32 v{T8+r}, {(3 - r) * 2048}, v{vA}")
def loads_u():
    L = []
    for r in range(3): L.append((setsrd(PTR['BK'], 0, 4*MB) if r == 0 else [], f"buffer_load_dwordx2 {vr(KK + 2*r, 2)}, v{T8+r}, {R}, 0 offen"))
    for r in range(8): L.append(([f"s_mov_b32 s{sT0}, {r*2048}"] if r % 2 == 0 else [], f"buffer_load_dwordx2 {vr(KK + 6 + 2*r, 2)}, v{vA}, {R}, s{sT0} offen offset:{(r&1)*2048}"))
    for r in range(8): L.append(((setsrd(PTR['BV'], 0, 4*MB) if r == 0 else []) + ([f"s_mov_b32 s{sT0}, {r*2048}"] if r % 2 == 0 else []), f"buffer_load_dwordx2 {vr(VV + 2*r, 2)}, v{vA}, {R}, s{sT0} offen offset:{(r&1)*2048}"))
    for z in range(2): L.append((setsrd(PTR['SHK'], 0, 8192) if z == 0 else [], f"buffer_load_dwordx4 {vr(WK + 4*z)}, v{vB}, {R}, 0 offen offset:{z*16}"))
    return L
def loads_g():
    L = []
    for r in range(2):
        for z in range(2): L.append((setsrd(PTR['X'], 0, 4*MB) if r + z == 0 else [], f"buffer_load_dwordx4 {vr(XX + 8*r + 4*z)}, v{vL16}, {R}, s{sT1} offen offset:{r*2048 + z*1024}"))
    for z in range(2): L.append((setsrd(PTR['GW'], 0, 2048) if z == 0 else [], f"buffer_load_dwordx4 {vr(GG + 4*z)}, v{vL16}, {R}, 0 offen offset:{z*1024}"))
    return L
def unp(d, s, hi): return f"v_and_b32 v{d}, s101, v{s}" if hi else f"v_lshlrev_b32 v{d}, 16, v{s}"
def gate_ops():
    o = []; a = T8 + 6
    for i in range(8):
        o += [unp(T8, GG + i, 0), unp(T8 + 1, GG + i, 1)]
        for r in range(2): o += [unp(T8 + 2 + 2*r, XX + 8*r + i, 0), unp(T8 + 3 + 2*r, XX + 8*r + i, 1)]
        for r in range(2): o.append(f"v_mul_f32 v{a+r}, v{T8}, v{T8+2+2*r}" if i == 0 else f"v_fmac_f32 v{a+r}, v{T8}, v{T8+2+2*r}")
        for r in range(2): o.append(f"v_fmac_f32 v{a+r}, v{T8+1}, v{T8+3+2*r}")
    o.append(None)
    for sh in (8, 4, 2, 1):
        for r in range(2): o.append(f"v_add_f32_dpp v{a+r}, v{a+r}, v{a+r} row_ror:{sh} row_mask:0xf bank_mask:0xf")
        o.append(None)
    for op in ("v_permlane32_swap_b32", "v_permlane16_swap_b32"):
        for r in range(2): o.append(f"v_mov_b32 v{T8+r}, v{a+r}")
        o.append(None)
        for r in range(2): o.append(f"{op} v{T8+r}, v{a+r}")
        for r in range(2): o.append(f"v_add_f32 v{a+r}, v{a+r}, v{T8+r}")
    for r in range(2): o.append(f"v_mul_f32 v{a+r}, {f32hex(-math.log2(math.e))}, v{a+r}")
    for r in range(2): o.append(f"v_exp_f32 v{a+r}, v{a+r}")
    for r in range(2): o.append(f"v_add_f32 v{a+r}, 1.0, v{a+r}")
    for r in range(2): o.append(f"v_rcp_f32 v{a+r}, v{a+r}")
    o.append(f"v_lshlrev_b32 v16, 24, v{vLANE}")
    for r in range(2): o.append(f"v_accvgpr_write_b32 a{240+r}, v{a+r}")
    return o
UO = 124
def u_ops(c):
    w, k, u, t = T8 + 2, 104, 115, T8 + 1
    o = [unp(w + i, WK + 2*c + (i >> 1), i & 1) for i in range(4)]
    o += [unp(k + r, KK + 2*r + (c >> 1), c & 1) for r in range(11)]
    o += [f"v_mul_f32 v{u+r}, v{w+3}, v{k+r}" for r in range(8)]
    for i in (2, 1, 0): o += [f"v_fmac_f32 v{u+r}, v{w+i}, v{k+r+3-i}" for r in range(8)]
    o += [unp(k + r, VV + 2*r + (c >> 1), c & 1) for r in range(8)]
    o += [f"v_mul_f32 v{u+r}, v{u+r}, v{k+r}" for r in range(8)]
    return o, [f"v_cvt_pk_bf16_f32 v{UO+q}, v{u+7-2*q}, v{u+6-2*q}" for q in range(4)]
class Seq:
    def __init__(self, fl): self.fl = fl; self.last = None; self.lag = 0
    def add(self, ops, lo, hi, after=(), stag=0):
        for k, x in enumerate(ops):
            if x is None: self.lag = 2; continue
            f = F(x, lo, hi, after=list(after)); f.slack = 8 + int(stag * (len(ops) - k))
            if self.last: f.after2.append((self.last, self.lag))
            self.lag = 0; self.fl.append(f); self.last = f
        return self.last
def make_hook():
    def hook(u, vm, fl, CH):
        if u < 0: setup_addr(vm); return
        E = lambda k, d: int(os.environ.get(k, d))
        sq = Seq(fl)
        Z0 = E('Z0', '75')
        vm.add([([f"s_lshl_b32 s{sT0}, s2, {FB}"], f"buffer_store_dwordx4 {vr(T8+4)}, v15, {sr(SRD_FL)}, s{sT0} offen offset:1024 sc1 ;! w=PREP"),
                ([], f"buffer_store_dwordx4 {vr(T8+4)}, v15, {sr(SRD_FL)}, s{sT0} offen sc1 ;! w=PREP"),
                ([f"s_lshl_b32 s{sT0}, s{sH}, 10", f"s_add_u32 s{sT0}, s{sT0}, {KFLAG}", f"s_cmp_eq_u32 s{sJ}, 7\ns_cselect_b32 s{sT0}, s{sT0}, 0x100000"],
                 f"buffer_store_dwordx4 {vr(T8+4)}, v15, {sr(SRD_FL)}, s{sT0} offen sc1 ;! w=ZK")], Z0, Z0 + 60, 2, stream='P', margin=30, after=[vm.setup])
        def spread(L, wts, P0, P1, after=()):
            ld = []; acc = 0
            for x, w in zip(L, wts):
                lo = int(P0 + (P1 - P0) * acc / sum(wts)); acc += w
                ld += vm.add([x], lo, lo + 100, CH * w, stream='P', margin=60, after=after)
            return ld
        P0, P1, G0, G1 = E('P0', '80'), E('P1', '330'), E('G0', '680'), E('G1', '750')
        ld = spread(loads_u(), [0.5] * 19 + [0.3] * 2, P0, P1)
        vm.add([(setsrd(PTR['DBG'], 0, 256) + [f"s_lshl_b32 s{sT0}, s{sH}, 2", f"s_cmp_eq_u32 s{sJ}, 7\ns_cselect_b32 s{sT0}, s{sT0}, 0x1000"],
                 f"buffer_store_dword v{vONE}, v{vATOM}, {R}, s{sT0} offen sc1 ;! r=ZK")], P1 + 10, P1 + 120, 1, stream='P', margin=60)
        mv = []
        for c in range(4):
            a, b = u_ops(c)
            if c == 0: sq.add(a[:1], 0, G0).after2.append((ld[-1], 60)); a = a[1:]
            b += [f"v_accvgpr_write_b32 a{224 + 4*c + q}, v{UO+q}" for q in range(4)]
            mv = [sq.add(a + b, 0, G0 - 1 - 56 * (3 - c), stag=0.9)]
        tr = []; prev = vm.bar[12]
        for c in range(4):
            w = F(f"ds_write_b128 v{vPM}, {ar(224 + 4*c)} offset:{ASLOT[0] + c * 1024}", 0, 64 * 13, after=mv, pr=-1); w.after2.append((prev, 2)); prev = w; fl.append(w)
        for c in range(4):
            r = F(f"ds_read_b128 {ar(224 + 4*c)}, v{vZ} offset:{ASLOT[0] + c * 1024} ;! w=UT", 0, 64 * 13 + 8, after=[prev], pr=-1); prev = r; fl.append(r); tr.append(r)
        g9 = [g for g in vm.groups if 'w=A9' in g['ops'][0][1].ins[-1].text][0]
        f9 = g9['ops'][0][1]; f9.ins = [I(f9.ins[0].text + " r=UT")]; f9.after2.append((prev, 6)); g9['lo'] += 22
        ld = spread(loads_g(), [1.0] * 4 + [0.3] * 2, G0, G1, after=mv)
        g = sq.add(gate_ops()[:1], 0, 930); g.after2.append((ld[-1], 50))
        last = sq.add(gate_ops()[1:], 0, 930, stag=0.85)
        for f_ in range(8, 16):
            for f in vm.kcv[f_]: f.after.append(last)
        T0, T1 = E('TQ0', '640'), E('TQ1', '880')
        prev = []
        for k in range(4 if T0 else 0):
            lo = T0 + (T1 - T0) * k // 4
            t = vm.add([([], f"global_load_dword v17, v{vQ}, {sr(PTR['WQ'], 2)}")], lo, lo + 100, CH * 2, after=prev, stream='T', margin=60)
            f = F(f"v_add_u32 v{vQ}, 0x4000, v{vQ}", lo, lo + 60, after=t, pr=-1); fl.append(f); prev = [f]
        SU = E('SU', '925')
        st = [(setsrd(PTR['WS'], WS_UT, WS_G - WS_UT + 8192) + [f"s_lshl_b32 s{sT0}, s2, 5", f"s_lshl_b32 s{sT1}, s{sW}, 3", f"s_add_u32 s{sT0}, s{sT0}, s{sT1}", f"s_add_u32 s{sT0}, s{sT0}, 0x{WS_G - WS_UT:x}"],
              f"buffer_store_dwordx2 a[240:241], v16, {R}, s{sT0} offen sc1 ;! w=PREP")]
        st += [([f"s_mov_b32 s{sT0}, {c * 8192}"], f"buffer_store_dwordx4 {ar(224 + 4*c)}, v{vU}, {R}, s{sT0} offen sc1 ;! w=PREP") for c in range(4)]
        vm.add(st, SU, 64 * 15 + 2, 5, after=[last] + tr, stream='P', margin=6)
    return hook
```

```python
from common import *
HBASE, HW = 131072, 8192
UBASE, UW = 65536, 5120
ZBASE, ZW = 98304, 4224
vA, vU, vZW, vZR, vUS, vA0, vE0, vG63, vEL, A63 = 64, 68, 69, 70, 71, 72, 73, 74, 75, 76
vD, vDR = 56, 11
sHB = 80
ACC, AB = 96, 0
S_H, S_U, S_YS = 8, 12, 24

def setup_scalar(sU0, sD2):
    p = Prog()
    p(f"s_lshl_b32 s3, s2, 2\ns_add_u32 s3, s3, s28\ns_lshl_b32 s{sD2}, s3, 1\ns_lshl_b32 s3, s3, 12\ns_sub_u32 s{sU0}, 0x{4*MB:x}, s3")
    srd(p, S_H, PTR['SSMK'], 3, 0, f"s{sU0}")
    if UP8: p(f"s_lshr_b32 s3, s2, 4\ns_lshl_b32 s3, s3, 3\ns_and_b32 s{sU0}, s2, 7\ns_add_u32 s3, s3, s{sU0}\ns_bfe_u32 s{sU0}, s2, 0x10003")
    else: p(f"s_lshr_b32 s3, s2, 1\ns_and_b32 s{sU0}, s2, 1")
    p(f"s_lshl_b32 s3, s3, 2\ns_add_u32 s3, s3, s28\ns_lshl_b32 s3, s3, 7\ns_add_u32 s3, s3, s{sU0}\ns_lshl_b32 s3, s3, 6")
    srd(p, S_U, PTR['WS'], 3, WS_UT, 8192 - 64)
    p(f"s_mul_i32 s{sU0}, s28, {UW}\ns_add_u32 s{sU0}, s{sU0}, {UBASE + 1024}\ns_mul_i32 s{sHB}, s28, {HW}\ns_add_u32 s{sHB}, s{sHB}, {HBASE}")
    return pairs(p)
def pairs(p):
    out = []
    for i in p.items:
        if i.op == 's_addc_u32': out[-1] += "\n" + i.text
        else: out.append(i.text)
    return out
def setup_vector(sU0, t):
    n, g, a = t, t + 1, t + 2
    return f"""
    v_and_b32 v{n}, 15, v1
    v_lshrrev_b32 v{g}, 4, v1
    v_lshl_add_u32 v{a}, v{g}, 3, v{n}
    v_add_u32 v{a}, 1, v{a}
    v_lshlrev_b32 v{vG63}, 1, v{a}
    v_add_u32 v{vA0}, s{sHB}, v{vG63}
    v_and_b32 v{a}, 1, v{a}
    v_mul_u32_u24 v{a}, 4030, v{a}
    v_add_u32 v{vA}, v{vA0}, v{a}
    v_add_u32 v{vA+1}, 0x400, v{vA}
    v_add_u32 v{vA+2}, 0x800, v{vA}
    v_add_u32 v{vA+3}, 0xc00, v{vA}
    v_add_u32 v{vEL}, s{sHB}, v3
    v_lshlrev_b32 v{vU}, 5, v{n}
    v_lshlrev_b32 v{a}, 4, v{g}
    v_sub_u32 v{vU}, v{vU}, v{a}
    v_add_u32 v{vU}, s{sU0}, v{vU}
    v_subrev_u32 v{vU}, 432, v{vU}
    """
def z_ops(a, b):
    return ops(f"""
    v_lshrrev_b32 v{a}, 4, v1
    v_bfe_u32 v{b}, v1, 2, 2
    v_xor_b32 v{vZW}, v{a}, v{b}
    v_lshlrev_b32 v{vZW}, 3, v{vZW}
    v_mul_u32_u24 v{vZR}, {ZW}, v{b}
    v_lshrrev_b32 v{b}, 1, v{b}
    v_lshl_add_u32 v{vZR}, v{b}, 5, v{vZR}
    v_lshl_add_u32 v{vZR}, v{a}, 6, v{vZR}
    v_lshrrev_b32 v{a}, 1, v{a}
    v_and_b32 v{b}, 3, v1
    v_xor_b32 v{a}, v{a}, v{b}
    v_lshl_add_u32 v{vZR}, v{a}, 3, v{vZR}
    v_lshrrev_b32 v{b}, 6, v0
    v_lshl_add_u32 v{vZR}, v{b}, 10, v{vZR}
    v_add_u32 v{vZR}, 0x{ZBASE:x}, v{vZR}
    v_xor_b32 v{vUS}, 16, v{vZR}
    v_mul_u32_u24 v{a}, {ZW}, v{b}
    v_add_u32 v{vZW}, v{vZW}, v{a}
    v_lshrrev_b32 v{b}, 1, v{b}
    v_and_b32 v{a}, 15, v1
    v_add_u32 v{a}, v{a}, v{b}
    v_lshl_add_u32 v{vZW}, v{a}, 5, v{vZW}
    v_add_u32 v{vZW}, 0x{ZBASE:x}, v{vZW}
    """)
def ops(txt): return [None if l.strip() == 'NONE' else l.strip() for l in txt.strip().split('\n')]
def dma_e():
    L = [([f"s_mov_b32 m0, s{sHB}"], f"buffer_load_dwordx4 v{vE0}, {sr(S_H)}, 0 offen lds ;! w=CH")]
    return L + [([f"s_add_u32 m0, s{sHB}, 1024", "s_mov_b32 s76, 992"] if q == 0 else [], f"buffer_load_dwordx4 v3, {sr(S_H)}, s76 offen offset:{q * 1024} lds ;! w=CH") for q in range(3)]
def dma_o(): return [([f"s_add_u32 m0, s{sHB}, 4096"] if q == 0 else [], f"buffer_load_dwordx4 v3, {sr(S_H)}, 34 offen offset:{q * 1024} lds ;! w=CH") for q in range(4)]
def make_o(T=(192, 200, 224, 232), R=(96, 100, 104, 108)):
    L = []
    for q in range(4): L += [f"ds_read_b128 {vr(T[q])}, v{vEL} offset:{q * 1024 + 64}", f"ds_read_b32 v{T[q]+4}, v{vEL} offset:{q * 1024 + 80} ; nodep"]
    for q in range(4): L += [f"v_alignbit_b32 v{R[q]+i}, v{T[q]+i+1}, v{T[q]+i}, 16" for i in range(4)] + [f"ds_write_b128 v{vEL}, {vr(R[q])} offset:{4096 + q * 1024}"]
    return L
def load_63(): return [([], f"buffer_load_dwordx4 {vr(A63)}, v{vG63}, {sr(S_H)}, 0 offen offset:4000")]
def load_u(sU0):
    L = [(([f"s_mov_b32 m0, s{sU0}"] if q == 0 else []) + [f"s_mov_b32 s76, {q * 1024}"], f"buffer_load_dwordx4 v{vUS}, {sr(S_U)}, s76 offen offset:{q * 1024} sc1 lds ;! w=CU") for q in range(4)]
    return L + [([f"s_sub_u32 m0, s{sU0}, 1024", "s_mov_b32 s76, 0x100000"], f"buffer_load_dwordx4 v3, {sr(S_U)}, s76 offen lds ;! w=CU")]
def load_d(sD2):
    return [([f"s_mov_b32 s16, s{PTR['SSMD']}", f"s_mov_b32 s17, s{PTR['SSMD']+1}", f"s_mov_b32 s18, 2048"], f"buffer_load_ushort v{vDR}, off, s[16:19], s{sD2}")]
def d_ops(t):
    o = f"""
    v_and_b32 v{t}, 15, v1
    v_lshrrev_b32 v{t+1}, 4, v1
    v_lshl_add_u32 v{t}, v{t+1}, 3, v{t}
    v_sub_u32 v{t}, 15, v{t}
    v_and_b32 v{t+1}, 1, v{t}
    v_lshlrev_b32 v{t+1}, 4, v{t+1}
    v_lshlrev_b32 v{t+1}, v{t+1}, v{vDR}
    v_ashrrev_i32 v{t}, 1, v{t}"""
    for q in range(4): o += f"\nv_cmp_eq_u32 vcc, {q}, v{t}\nNONE\nv_cndmask_b32 v{vD+q}, 0, v{t+1}, vcc"
    return ops(o)
A = lambda rho, pp: AB + 64 * (rho & 1) + 4 * pp
B = lambda rho, sg: AB + 64 * (rho & 1) + 32 + 4 * sg
def rds(rho, k):
    kap = 8 * k + rho; beta = 8 * k - rho
    L = [f"ds_read_b128 {ar(B(rho, k))}, v{vU} offset:{64 * (beta + 7)}"]
    if kap == 0: return L + [f"ds_read_b128 {ar(A(0, 0))}, v{vA0}"]
    if kap == 63: return L
    o = 16 * (kap % 16)
    return L + [f"ds_read2_b32 {ar(A(rho, k) + 2 * z, 2)}, v{vA + kap // 16} offset0:{o + 2 * z} offset1:{o + 2 * z + 1}" for z in range(2)]
def first_reads(p, hint=True):
    for k in range(8):
        for x in rds(0, k): p(x + ((" ;! r=CU" if f"v{vU} " in x else " ;! r=CH") if hint else ""))
def conv_compute(p, extra, post, st, merge=False):
    M, fl = [], []
    start = {}; done = {}
    for rho in range(8):
        start[rho] = len(M)
        for tau in range(8):
            d = vr(ACC + 4 * tau)
            if rho == 0: M.append(mfma(d, vr(vD), ar(B(0, tau)), '0'))
            for pp in snake(range(tau + 1), tau if os.environ.get('SN2', '1') == '1' else 0): M.append(mfma(d, vr(A63) if (rho, pp) == (7, 7) else ar(A(rho, pp)), ar(B(rho, tau - pp)), d))
            done[tau] = len(M) - 1
    lastrd = []
    for rho in range(1, 8):
        for k in range(8):
            for i, x in enumerate(rds(rho, k)):
                lo = start[rho - 1]
                f = F(x, lo + 4 * k, start[rho] + k * (k + 1) // 2 - 9 + i, pr=lo + 4 * k + i); fl.append(f)
                if rho == 7: lastrd.append(f)
    n = len(M)
    q = Prog(); q(f"s_lshl_b32 s3, s2, 14\ns_lshl_b32 s31, s28, 12\ns_add_u32 s3, s3, s31"); srd(q, S_YS, PTR['WS'], 3, WS_Y2, 4096)
    prev = []
    for x in pairs(q):
        f = F(x, 230, n - 2, after=prev, cls='S'); fl.append(f); prev = [f]
    zp = []
    for x in z_ops(80, 81): zp = [F(x, 150, 250, after=zp, lag=0)]; fl += zp
    lastrd += zp
    tailf = []
    for tau in range(8):
        a = ACC + 4 * tau
        c0 = F(f"v_cvt_pk_bf16_f32 v{a}, v{a}, v{a+1}", done[tau] + 7, n + 40 + tau); c1 = F(f"v_cvt_pk_bf16_f32 v{a+1}, v{a+2}, v{a+3}", done[tau] + 7, n + 40 + tau, after=[c0], lag=0)
        tailf += [c0, c1, F(f"ds_write_b64 v{vZW}, {vr(a, 2)} offset:{tau * 512} ;! w=ZW", done[tau] + 8, n + 50 + tau, after=[c1] + lastrd)]
    fl += tailf
    if merge:
        for f in tailf: f.opt = True
    extra(fl, n)
    p.add_sched(schedule(M, fl, verbose=('!' if os.environ.get('V') else '') + "conv"))
    st(p, 't')
    rd = [f"ds_read_b64_tr_b16 {vr(ACC + 4*m + 2*hf, 2)}, v{vUS if m & 1 else vZR} offset:{m * 256 + hf * 32} ;! w=ZR" for m in range(4) for hf in range(2)]
    ys = [f"buffer_store_dwordx4 {vr(ACC + 4*m)}, v3, {sr(S_YS)}, 0 offen offset:{m * 1024} sc1 ;! w=YST" for m in range(4)]
    if merge:
        post(p)
        return [f.ins[0].text for f in tailf if f.gap is None], rd, ys
    p("s_barrier ;! r=ZW")
    for x in rd: p(x)
    post(p)
    for x in ys: p(x)
```

```python
import sys, os
from attn import *
import ssm, prepf
OUT4 = os.environ.get('OUT4', '1') == '1'
if OUT4: import outp4 as outp
else: import outp
sU0, sD2 = 78, 79
vP32 = 6
polls.t.update(prep=(SRD_DBG, f"v{vP32}", "0", 128, 0, 'eq', vPOLL), ctx=(SRD_FL, f"v{outp.vPX}", "0", 8, 1, 'ne', vPOLL),
               conv=(SRD_FL, f"v{outp.vPC}", "0", 0, 1, 'ne', vPOLL))
if OUT4: polls.t.update(p12=(SRD_FL, f"v{outp.vP12}", f"s{outp.sFL}", 128, 1, 'ne', vPOLL))
else: polls.t.update(pair=(SRD_FL, "off", f"s{outp.sWO2}", 0, 1, 'ne', vPOLL))

class Fuse:
    def seq(self, fl, lst, lo, hi, lag=0, after=()):
        sq = prepf.Seq(fl)
        for x in lst:
            if x is not None and lag: sq.lag = max(sq.lag, lag)
            sq.add([x], lo, hi, after=after)
        return sq.last
    def seq2(self, fl, lst, lo, hi):
        sq = prepf.Seq(fl)
        for x in lst: sq.add([x], lo, hi)
        return sq.last
    def ex43(self, fl, d):
        n = d['n']
        a = self.seq(fl, [f"v_and_b32 v{vP32}, 31, v{vLANE}", f"v_lshlrev_b32 v{vP32}, 2, v{vP32}",
                          f"v_and_b32 v14, 60, v{vLANE}", f"v_lshl_add_u32 v{ssm.vUS}, v14, 4, v{vL16}", f"v_subrev_u32 v{ssm.vE0}, 32, v{vL16}"], 0, 14)
        s_ = self.seq(fl, ssm.setup_scalar(sU0, sD2), 0, 84, lag=1, after=[a])
        self.seq(fl, ssm.ops(ssm.setup_vector(sU0, 16)), 0, n - 14, after=[s_])
        d['pre'] += [([([], polls.load("prep"))], [a])]
        chk = F(polls.check("prep"), d['gb'] + 1, d['gb'] + 1, cls='B'); fl.append(chk)
        d['end'] += [(ssm.dma_e() + ssm.load_d(sD2), [s_])]
    def ex32(self, fl, d):
        if os.environ.get('OP', 'l') == 'e': d['end'] += [(ssm.dma_o() + ssm.load_63(), [])]
        elif os.environ.get('OP', 'l') in 'tlb':
            d['end'] += [(ssm.load_63(), [])]
            if os.environ.get('OP') == 'b':
                L = ssm.make_o((192, 198, 224, 28), (80, 84, 88, 92)); g0 = int(os.environ.get('OB', '44')); n = d['n']; pw = []
                for q in range(4):
                    r = [F(x, g0 + 4 * q, g0 + 12 + 4 * q) for x in L[2*q:2*q+2]]
                    v = [F(x, 0, n - 14 + 4 * q - 2) for x in L[8+5*q:12+5*q]]
                    for f in v: f.after2 += [(x, 7) for x in r]
                    w = F(L[12+5*q], 0, n - 14 + 4 * q, after=v, cls='G'); w.after2 += [(x, 3) for x in pw]; pw = [w]
                    fl += r + v + [w]
        else: d['mid'] += [(ssm.dma_o(), [])]; d['end'] += [(ssm.load_63(), [])]
        self.seq(fl, ssm.d_ops(16), 50, d['n'] - 1)
    def ex4e(self, fl, d):
        d['mid'] += [([([], f"buffer_load_dword v12, v22, s[8:11], s12 offen")], [])]
        d['aft'] = ["s_add_u32 s12, s12, s13", "s_sub_u32 s13, s13, 0x4000"]
        d['sp'] = 5
    def pre4(self):
        q = Prog(); q(f"s_lshl_b32 s12, s{sH}, 18"); srd(q, 8, PTR['WO'], 12, 0, 262144)
        q(f"s_sub_u32 s12, s{sJ}, 1\ns_lshl_b32 s12, s12, 14\ns_mov_b32 s13, 0x18000\nv_lshlrev_b32 v22, 6, v0")
        return ssm.pairs(q)
    def tail_dma(self): return [y for pre, x in ssm.load_u(sU0) + (ssm.dma_o() if os.environ.get('OP') == 't' else []) for y in pre + [x]]
    def tail_stage(self): return ssm.make_o() if os.environ.get('OP', 'l') == 'l' else []
    def tail_reads(self):
        q = Prog(); ssm.first_reads(q); return q.items

def build(stamps):
    p = Prog()
    if os.environ.get('DIAG', 's')[0] != 's': p("s_memrealtime s[4:5]\ns_memtime s[6:7]\ns_waitcnt lgkmcnt(0)\nv_writelane_b32 v23, s4, 0\nv_writelane_b32 v23, s6, 1")
    p.note('''Generated by gen/fused.py (hand-written generators, see gen/*.py). One workgroup per CU, four waves, bf16 16x16x32 MFMA throughout.
    Phase 1: K/V projection (256 keys of head h) and Q projection (row blocks j and 15-j) as one static MFMA stream.
    The gaps carry the short conv / k*v product, the gate, the K/V fragment stores and prefetches.''')
    setup(p)
    st = Stamps(stamps)
    if stamps: p("v_mov_b32 v23, 0")
    gemm_stream(p, st, hook=prepf.make_hook(), endhook=lambda fl, bar, vm: (gemm_end(fl, bar, vm), Fuse().seq(fl, Fuse().pre4(), 64 * 27, 64 * 29, lag=1)))
    st(p, '1ga')
    p.note('''Phase 2: causal attention. Scores are in log2 units. The row maximum over the first 16 keys is subtracted through the MFMA C operand;
    every row sum is checked at the end (must stay below 2^60) and a wave that fails redoes its rows with the true row maximum (L_slow).''')
    attention(p, st, Fuse())
    st(p, '1t')
    p("L_slow_ret:")
    E = lambda k, d: int(os.environ.get(k, d))
    NC, EC = E('NC', '3' if OUT4 else '2'), E('EC', '190' if OUT4 else '240')
    def extra(fl, n):
        for g in ([int(x) for x in os.environ['CU'].split(',')] if os.environ.get('CU') else (0, 62, 160, n - 24)): st.fill(fl, g, 't')
        vm = VM(fl); CC = float(os.environ.get('CC', '4'))
        GS = E('GSIG', '80' if DEF3 else '44')
        b2 = F("s_barrier ;! r=CST", GS, GS, cls='B'); fl.append(b2)
        if DEF3:
            R = attn_tail.rest; rd = {}
            for f_ in range(4):
                blk = R[22 * f_:22 * f_ + 22]
                r = [F(i.text, 0, 12 + 5 * f_, pr=-3) for i in blk[:8]]
                for f in r: rd[f.ins[0].reads[0]] = f
                m = [F(i.text, 0, GS - 30 + 4 * f_, after=[r[k]], pr=f_) for k, i in enumerate(blk[8:16])]
                c = [F(i.text, 0, GS - 28 + 4 * f_, after=m[2*k:2*k+2], pr=f_) for k, i in enumerate(blk[16:20])]
                fl += r + m + c
                vm.add([([blk[20].text], blk[21].text)], 20 + 6 * f_, GS, 3, stream='X', margin=4)[0].after += c
            for f in fl:
                if f.cls == 'D' and f.lo < 44: f.after += [rd[w] for w in f.ins[0].writes if w in rd]
        q = Prog(); outp.out_setup(q)
        su = Fuse().seq2(fl, ssm.pairs(q), 0, GS)
        s2a, s2b = outp.out_setup2()
        su2 = Fuse().seq(fl, s2a, 46, EC - 55, lag=1, after=[su])
        Fuse().seq(fl, s2b, 46, 228, lag=1, after=[su2, b2])
        G0_, G1_, G3 = [int(x) for x in os.environ.get('CG', '120,172,226').split(',')]
        vm.add([([], f"buffer_store_dword v{vONE}, v{vATOM}, {sr(SRD_FL)}, s{sLF} offen offset:8 sc1")], GS + 1, GS + 12, 1, after=[b2], margin=6)
        CT4 = E('CT4', '0')
        if CT4: touch_fill(fl, vm, CT4, "outmain", "codeend", 20, 12, 99)
        for k in range(1, len(HS) if HOP else 0):
            if HS[k][0] >= 10000: fl.append(F(hop_session(k), HS[k][0] - 10000, HS[k][0] - 10000, cls='B'))
        half = lambda l: (l[:4], l[4:])
        if OUT4:
            for u in range(4): vm.add(outp.dmaW(u), GS + 1, 200 + u, 5, after=[b2, su], stream='W')
            gw = 170 if outp.MERGE else 262
            bw = F("s_barrier ;! r=OW0", gw, gw, cls='B'); fl.append(bw)
            for k in range(4 * outp.NPRE): fl.append(F(outp.rdW(k >> 2, (k >> 1) & 1, k & 1), gw + 1, n - 1, after=[bw, su2]))
        else:
            bar = {}
            for u, g in ((0, G0_), (1, G1_)):
                for h in half(outp.dmaW(u)): vm.add(h, GS + 1, g, 4, after=[b2, su], stream='W')
                bar[u] = F(f"s_barrier ;! r=OW{u}" + (",RW0" if u else ""), g, g, cls='B'); fl.append(bar[u])
                for k in range(32): fl.append(F(outp.rdW(8 * u + (k >> 2), (k >> 1) & 1, k & 1), g + 1, g + 18 + k, after=[bar[u]], pr=0))
            b3 = F("s_barrier ;! r=RW1", G3, G3, cls='B'); fl.append(b3)
            for h in half(outp.dmaW(2)): vm.add(h, G1_ + 1, n + 60, CC, after=[bar[1]], stream='W', margin=0)
            for h in half(outp.dmaW(3)): vm.add(h, G3 + 1, n + 124, CC, after=[b3], stream='W', margin=0)
        pl = vm.add([([], polls.load("ctx"))], EC - 50, EC, 2, after=[su2], margin=30)
        chk = F(polls.inline("ctx"), EC, EC, after=pl, cls='B'); fl.append(chk)
        for u in range(NC):
            for h in half(outp.ldC(u)): vm.add(h, EC + 1, n + 20 + 64 * u, CC, after=[chk], stream='C', margin=0)
        vm.emit(t0=0)
        extra.rest = []
        for (pre, f), t, g, lat in vm.order:
            for x in pre + [f]:
                if f.lo >= n - 2: fl.remove(x); extra.rest += x.ins
    def post(p): p.add(extra.rest)
    st(p, '1t')
    outp.CONV_TAIL = ssm.conv_compute(p, extra, post, st, merge=OUT4 and outp.MERGE)
    st(p, '1te')
    def mid(fl):
        gy = E('GY', '200') if OUT4 and outp.MERGE else 50
        b = F(f"s_barrier ;! r=YST{outp.TAG if OUT4 and outp.MERGE else ''}", gy, gy, cls='B'); fl.append(b)
        sig = ([f"s_lshl_b32 s98, s2, {FB}"], f"buffer_store_dword v{vONE}, v{vATOM}, {sr(SRD_FL)}, s98 offen sc1")
        pl = ([], polls.load("conv"))
        return [(gy + 60, gy + 1, [sig], [b]), (outp.GE, outp.GE - 98, [pl], [])] if OUT4 else [(64 * 4 - 30, 51, [sig], [b]), (64 * 11 + 1, 64 * 7, [pl], [])]
    p("L_outmain:")
    outp.out_main(p, 4, NC, st, mid=mid)
    st(p, '1te')
    outp.out_epilogue(p, st)
    if stamps: p("s_waitcnt vmcnt(0)")
    st.finish(p)
    D = os.environ.get('DIAG')
    if D:
        p("s_memrealtime s[0:1]\ns_memtime s[4:5]\ns_waitcnt lgkmcnt(0)\nv_readlane_b32 s6, v23, 0\nv_readlane_b32 s7, v23, 1")
        if D[0] == 'c': p(f"s_mov_b32 s8, {int(D[1:])}")
        if D[0] == 'd': p("s_sub_u32 s8, s0, s6\ns_mul_i32 s8, s8, 8")
        if D[0] == 's': p(f"v_readlane_b32 s6, v23, 13\nv_readlane_b32 s8, v23, {int(D[1:])}\ns_sub_u32 s8, s8, s6\ns_mul_i32 s8, s8, 16")
        if D[0] == 'x': p(f"s_getreg_b32 s8, hwreg(HW_REG_XCC_ID)\ns_sub_u32 s8, s8, s2\ns_and_b32 s8, s8, {int(D[1:])}\ns_mul_i32 s8, s8, 5000\ns_add_u32 s8, s8, 20000")
        if D[0] == 'y': p("s_sub_u32 s8, s4, s7\ns_lshr_b32 s8, s8, 1")
        if os.environ.get('DM'):
            m, v = os.environ['DM'].split(',')
            p(f"s_and_b32 s9, s2, {m}\ns_cmp_eq_u32 s9, {v}\ns_cselect_b32 s8, s8, 0")
        p("L_diag:\ns_memrealtime s[0:1]\ns_waitcnt lgkmcnt(0)\ns_sub_u32 s0, s0, s6\ns_cmp_lt_u32 s0, s8\ns_cbranch_scc1 L_diag")
    p("L_end:\ns_endpgm")
    for x in polls.ool: emit(p, x)
    p("L_codeend:")
    slow_path(p, lambda q: ssm.first_reads(q, False))
    X = os.environ.get('ABL2', '')
    def drop(i):
        if not isinstance(i, I): return False
        t = i.text
        if 'e' in X and 'w=ST' in t: return True
        if 'l' in X and 'w=SL' in t: return True
        if 'c' in X and 'w=CST' in t and 'KEEP' not in t: return True
        if 'p' in X and 'w=PST' in t: return True
        if 'y' in X and 'w=YST' in t: return True
        if 'q' in X and i.kind == 'vld' and 's[4:7], s36' in t: return True
        return False
    if X:
        p.items = [I("HINT ;!" + i.text.split(';!')[1]) if drop(i) and ';!' in i.text else i for i in p.items if not (drop(i) and ';!' not in i.text)]
    p.finalize()
    if os.environ.get('HB', '1') == '1':
        its = p.items; n = 0
        for k in range(2, len(its) - 1):
            w, b, m = its[k], its[k + 1], its[k - 1]
            if not (isinstance(w, I) and isinstance(b, I) and isinstance(m, I) and w.kind == 'wait' and b.op == 's_barrier' and m.kind == 'mfma' and 'lgkm' not in w.text): continue
            j = k - 2; dv = 0
            while isinstance(its[j], I) and its[j].kind not in ('mfma', 'branch', 'misc') and k - j < 6:
                dv += its[j].kind in ('dma', 'vld', 'vst'); j -= 1
            v = int(re.search(r'vmcnt\((\d+)\)', w.text).group(1)) - dv
            if not (isinstance(its[j], I) and its[j].kind == 'mfma') or v < 0: continue
            nx = its[j + 1]
            if nx.kind == 'wait' and 'vmcnt' not in nx.text: its[j + 1] = I(f"s_waitcnt vmcnt({v}) " + nx.text.split()[1]); its[k] = I("HINT")
            elif nx.kind in ('salu', 'wait', 'nop'): continue
            else: del its[k]; its.insert(j + 1, I(f"s_waitcnt vmcnt({v})"))
            n += 1
        print("; barrier waits hoisted", n)
        p.finalize()
    if os.environ.get('JITTER'):
        import random
        rnd = random.Random(int(os.environ['JITTER'])); out = []; its = p.items; n = 0
        def scc_dead(k):
            for i in its[k:]:
                if isinstance(i, Label): return False
                if not isinstance(i, I): continue
                if i.op.startswith(('s_cbranch', 's_cselect', 's_addc', 's_branch', 's_endpgm')): return False
                if i.kind == 'salu' and i.op not in NOSCC: return True
            return False
        for k, i in enumerate(its):
            hit = isinstance(i, I) and (i.op == 's_barrier' or (i.kind == 'mfma' and rnd.random() < 0.01)) and scc_dead(k + 1)
            def jit():
                nonlocal n
                n += 1
                if os.environ.get('JW'):
                    if rnd.random() > 0.12: return []
                    return [I(f"s_bitcmp1_b32 0x{rnd.getrandbits(32) & rnd.getrandbits(32):x}, {rnd.choice(('s2', 's29', 's30'))}"), I(f"s_cbranch_scc0 L_jit{n}")] + [I("s_sleep 127")] * rnd.randint(1, 4) + [Label(f"L_jit{n}")]
                return [I(f"s_bitcmp1_b32 {rnd.randint(1, 14)}, s28"), I(f"s_cbranch_scc0 L_jit{n}"), I(f"s_sleep {rnd.choice((2, 5, 10, 20))}"), Label(f"L_jit{n}")]
            if hit and rnd.random() < 0.5: out += jit()
            out.append(i)
            if hit and rnd.random() < 0.7: out += jit()
        p.items = out; print("; jitter sites", n)
    return p

if __name__ == "__main__":
    import subprocess, re
    TF = os.environ.get("TMPF", "_f")
    p = build(bool(os.environ.get('STAMP')))
    LLVM = "bin/"
    def assemble():
        txt = module([(NAME + "_kernel", p, 256, 256, 163840, 512, 256)])
        txt = "\n".join(l.split(" ;!")[0].split(" ;hop")[0] for l in txt.split("\n"))
        open(TF + ".s", "w").write(re.sub(r"NL(\d+)_(\w+?)__(\w+?)_MAX", "0x1234", re.sub(r"NL(\d+)_(\w+?)__(\w+?)_P(ER|M1)", "7", txt)))
        subprocess.run([LLVM + "clang", "-x", "assembler", "-target", "amdgcn-amd-amdhsa", "-mcpu=gfx950", "-c", TF + ".s", "-o", TF + ".o"], check=True)
        sym = {l.split()[-1]: int(l.split()[1], 16) for l in subprocess.run([LLVM + "llvm-readelf", "-s", TF + ".o"], capture_output=True, text=True).stdout.split("\n") if " L_" in l}
        return txt, sym
    if HOP:
        its = p.items; tmp = []
        for k, i in enumerate(its):
            if isinstance(i, I): tmp.append(Label(f"L_i{k}"))
            tmp.append(i)
            if isinstance(i, I): tmp.append(Label(f"L_e{k}"))
        p.items = tmp; _, sy = assemble()
        out = []; pos = None; pads = []; inloop = False; NP = max(x[1] for x in HS if x[1] < 90); SITES = ['L_last4', 'L_after4', 'L_ev2', 'L_hook2']
        for k, i in enumerate(its):
            if isinstance(i, Label):
                if i.name == "L_pg0": pos = 0
                elif pos is not None and i.align: pos = -(-pos >> i.align) << i.align
                if i.name in ("L_loop4", "L_loop2"): inloop = True
                if i.name in ("L_ev4", "L_ev2"): inloop = False
                if i.name == "L_end": pos = None
            out.append(i)
            if isinstance(i, Label) and i.name in SITES and HS[-1][1] == 99:
                pg = 90 + SITES.index(i.name); pads.append(pg); out += [Label(f"L_pad{pg}"), I(f"s_cbranch_execz NEXT{pg}")]; pos += 4
            if isinstance(i, I) and pos is not None:
                pos += sy[f"L_e{k}"] - sy[f"L_i{k}"]
                land = pos + (4 if HOP == 1 else 0); pg = land >> 12
                nxt = its[k + 1] if k + 1 < len(its) else None
                ok = isinstance(nxt, I) and i.op != 's_getpc_b64' and 'exec' not in i.text and ';hop' not in i.text and ';hop' not in nxt.text and (i.kind == 'mfma' or (land & 4095) >= 44)
                if 1 <= pg <= NP and pg not in pads and (land & 4095) < 60 and ok and not (inloop and (HOP == 1 or os.environ.get('NLP'))):
                    pads.append(pg)
                    if HOP == 1: out += [I(f"s_branch L_sk{pg}"), Label(f"L_pad{pg}"), I(f"s_branch NEXT{pg}"), Label(f"L_sk{pg}")]; pos += 8
                    else: out += [Label(f"L_pad{pg}"), I(f"s_cbranch_execz NEXT{pg}")]; pos += 4
        ses = [[g for g in pads if (HS[k - 1][1] if k else 0) < g <= HS[k][1]] for k in range(len(HS))]
        for k, i in enumerate(out):
            if not isinstance(i, I): continue
            m = re.search(r"NEXT(\d+)", i.text)
            if m:
                z = [z for z in range(len(ses)) if int(m.group(1)) in ses[z]][0]; n = ses[z].index(int(m.group(1))) + 4
                out[k] = I(i.text.replace(m.group(0), f"L_pad{ses[z][n]}" if n < len(ses[z]) else f"L_hr{z}"))
            m = re.search(r";hop(\d)_(\d)", i.text)
            if m and int(m.group(2)) < len(ses[int(m.group(1))]): out[k] = I(i.text.replace(f"L_hr{m.group(1)}", f"L_pad{ses[int(m.group(1))][int(m.group(2))]}"))
        p.items = out
    txt, sym = assemble()
    if HOP:
        assert all(0 <= sym[f"L_pad{g}"] - sym["L_pg0"] - 4096 * g < 64 for g in pads if g < 90), [(g, sym[f"L_pad{g}"] - sym["L_pg0"] - 4096 * g) for g in pads]
        print("; pads", pads)
    def rep(m):
        nl = (sym["L_" + m.group(3)] - sym["L_" + m.group(2)] - 64) // 128 + 1
        per = (nl + int(m.group(1)) - 1) // int(m.group(1)); assert per <= 32 and nl > 65
        return str({'PER': per, 'PM1': per - 1, 'MAX': nl - 1}[m.group(4)])
    txt = re.sub(r"NL(\d+)_(\w+?)__(\w+?)_(PER|PM1|MAX)", rep, txt)
    for a, b in re.findall(r"(L_\w+)-(L_pc\d+)", txt): assert sym[a] > sym[b], "code prefetch targets must lie ahead"
    print("; code bytes", sym["L_codeend"])
    open(sys.argv[1], "w").write(txt)
```

```python
from k1 import *
SP_ = 52
sT0, sT1 = 76, 77
WK, KK, VV = 50, 58, 80
GG, XX = 104, 112
T8 = 96
vA, vB, vU, vQ, vZ, vPM = 18, 19, 20, 21, 22, 6
WQN = int(os.environ.get('WQN', '4'))
def setsrd(ptr, off, nrec):
    if off: return [f"s_add_u32 s{SP_}, s{ptr}, 0x{off:x}\ns_addc_u32 s{SP_+1}, s{ptr+1}, 0", f"s_mov_b32 s{SP_+2}, 0x{nrec:x}"]
    return [f"s_mov_b32 s{SP_}, s{ptr}", f"s_mov_b32 s{SP_+1}, s{ptr+1}", f"s_mov_b32 s{SP_+2}, 0x{nrec:x}"]
R = sr(SP_)
def setup_addr(p):
    p(f"""
    s_mov_b32 s{SP_}, s{PTR['X']}
    s_mov_b32 s{SP_+1}, s{PTR['X']+1}
    s_mov_b32 s{SP_+2}, 0x{4*MB:x}
    s_mov_b32 s{SP_+3}, 0x20000
    s_lshr_b32 s3, s2, 4
    s_lshl_b32 s3, s3, 18
    s_and_b32 s31, s2, 15
    s_lshl_b32 s31, s31, 7
    s_add_u32 s3, s3, s31
    v_lshrrev_b32 v{vZ}, 4, v0
    v_lshlrev_b32 v{vA}, 14, v{vZ}
    v_lshl_add_u32 v{vA}, v17, 3, v{vA}
    v_add_u32 v{vA}, s3, v{vA}
    s_lshl_b32 s31, s31, 2
    v_lshlrev_b32 v{vB}, 5, v17
    v_add_u32 v{vB}, s31, v{vB}
    s_lshl_b32 s31, s31, 9
    s_lshr_b32 s3, s2, 4
    s_lshl_b32 s3, s3, 9
    s_add_u32 s3, s3, s31
    s_lshl_b32 s31, s{sW}, 7
    s_add_u32 s3, s3, s31
    v_lshlrev_b32 v{vU}, 15, v14
    v_lshl_add_u32 v{vU}, v15, 4, v{vU}
    v_add_u32 v{vU}, s3, v{vU}
    v_bfe_u32 v{vQ}, v17, 3, 1
    v_lshl_add_u32 v{vQ}, v{vQ}, 2, v16
    v_xor_b32 v{vQ}, v{vQ}, v15
    v_lshl_add_u32 v{vPM}, v15, 3, v{vQ}
    v_lshlrev_b32 v{vPM}, 4, v{vPM}
    v_add_u32 v{vPM}, s{sW8K}, v{vPM}
    s_lshr_b32 s3, s2, 3
    s_lshl_b32 s3, s3, 18
    s_lshl_b32 s31, s{sW}, 16
    s_add_u32 s3, s3, s31
    s_and_b32 s31, s2, 7
    s_lshl_b32 s31, s31, 10
    s_add_u32 s3, s3, s31
    v_lshrrev_b32 v{vQ}, {dict([(1, 3), (2, 4), (4, 5), (8, 6)])[WQN]}, v{vLANE}
    v_lshlrev_b32 v{vQ}, 13, v{vQ}
    v_bfe_u32 v{vZ}, v{vLANE}, {dict([(1, 0), (2, 1), (4, 2), (8, 3)])[WQN]}, 3
    v_lshl_add_u32 v{vQ}, v{vZ}, 7, v{vQ}
    v_add_u32 v{vQ}, s3, v{vQ}
    v_xor_b32 v{vZ}, v14, v{vLANE}
    v_lshlrev_b32 v{vZ}, 4, v{vZ}
    v_add_u32 v{vZ}, s{sW8K}, v{vZ}
    s_mov_b32 s101, 0xffff0000
    s_lshl_b32 s3, s{sW}, 20
    v_add_u32 v15, s3, v{vL16}
    v_mov_b32 v{T8+4}, 0
    v_mov_b32 v{T8+5}, 0
    v_mov_b32 v{T8+6}, 0
    v_mov_b32 v{T8+7}, 0
    s_lshl_b32 s{sT1}, s2, 14
    s_add_u32 s{sT1}, s{sT1}, s{sW4K}
    """)
    for r in range(3): p(f"v_subrev_u32 v{T8+r}, {(3 - r) * 2048}, v{vA}")
def loads_u():
    L = []
    for r in range(3): L.append((setsrd(PTR['BK'], 0, 4*MB) if r == 0 else [], f"buffer_load_dwordx2 {vr(KK + 2*r, 2)}, v{T8+r}, {R}, 0 offen"))
    for r in range(8): L.append(([f"s_mov_b32 s{sT0}, {r*2048}"] if r % 2 == 0 else [], f"buffer_load_dwordx2 {vr(KK + 6 + 2*r, 2)}, v{vA}, {R}, s{sT0} offen offset:{(r&1)*2048}"))
    for r in range(8): L.append(((setsrd(PTR['BV'], 0, 4*MB) if r == 0 else []) + ([f"s_mov_b32 s{sT0}, {r*2048}"] if r % 2 == 0 else []), f"buffer_load_dwordx2 {vr(VV + 2*r, 2)}, v{vA}, {R}, s{sT0} offen offset:{(r&1)*2048}"))
    for z in range(2): L.append((setsrd(PTR['SHK'], 0, 8192) if z == 0 else [], f"buffer_load_dwordx4 {vr(WK + 4*z)}, v{vB}, {R}, 0 offen offset:{z*16}"))
    return L
def loads_g():
    L = []
    for r in range(2):
        for z in range(2): L.append((setsrd(PTR['X'], 0, 4*MB) if r + z == 0 else [], f"buffer_load_dwordx4 {vr(XX + 8*r + 4*z)}, v{vL16}, {R}, s{sT1} offen offset:{r*2048 + z*1024}"))
    for z in range(2): L.append((setsrd(PTR['GW'], 0, 2048) if z == 0 else [], f"buffer_load_dwordx4 {vr(GG + 4*z)}, v{vL16}, {R}, 0 offen offset:{z*1024}"))
    return L
def unp(d, s, hi): return f"v_and_b32 v{d}, s101, v{s}" if hi else f"v_lshlrev_b32 v{d}, 16, v{s}"
def gate_ops():
    o = []; a = T8 + 6
    for i in range(8):
        o += [unp(T8, GG + i, 0), unp(T8 + 1, GG + i, 1)]
        for r in range(2): o += [unp(T8 + 2 + 2*r, XX + 8*r + i, 0), unp(T8 + 3 + 2*r, XX + 8*r + i, 1)]
        for r in range(2): o.append(f"v_mul_f32 v{a+r}, v{T8}, v{T8+2+2*r}" if i == 0 else f"v_fmac_f32 v{a+r}, v{T8}, v{T8+2+2*r}")
        for r in range(2): o.append(f"v_fmac_f32 v{a+r}, v{T8+1}, v{T8+3+2*r}")
    o.append(None)
    for sh in (8, 4, 2, 1):
        for r in range(2): o.append(f"v_add_f32_dpp v{a+r}, v{a+r}, v{a+r} row_ror:{sh} row_mask:0xf bank_mask:0xf")
        o.append(None)
    for op in ("v_permlane32_swap_b32", "v_permlane16_swap_b32"):
        for r in range(2): o.append(f"v_mov_b32 v{T8+r}, v{a+r}")
        o.append(None)
        for r in range(2): o.append(f"{op} v{T8+r}, v{a+r}")
        for r in range(2): o.append(f"v_add_f32 v{a+r}, v{a+r}, v{T8+r}")
    for r in range(2): o.append(f"v_mul_f32 v{a+r}, {f32hex(-math.log2(math.e))}, v{a+r}")
    for r in range(2): o.append(f"v_exp_f32 v{a+r}, v{a+r}")
    for r in range(2): o.append(f"v_add_f32 v{a+r}, 1.0, v{a+r}")
    for r in range(2): o.append(f"v_rcp_f32 v{a+r}, v{a+r}")
    o.append(f"v_lshlrev_b32 v16, 24, v{vLANE}")
    for r in range(2): o.append(f"v_accvgpr_write_b32 a{240+r}, v{a+r}")
    return o
UO = 124
def u_ops(c):
    w, k, u, t = T8 + 2, 104, 115, T8 + 1
    o = [unp(w + i, WK + 2*c + (i >> 1), i & 1) for i in range(4)]
    o += [unp(k + r, KK + 2*r + (c >> 1), c & 1) for r in range(11)]
    o += [f"v_mul_f32 v{u+r}, v{w+3}, v{k+r}" for r in range(8)]
    for i in (2, 1, 0): o += [f"v_fmac_f32 v{u+r}, v{w+i}, v{k+r+3-i}" for r in range(8)]
    o += [unp(k + r, VV + 2*r + (c >> 1), c & 1) for r in range(8)]
    o += [f"v_mul_f32 v{u+r}, v{u+r}, v{k+r}" for r in range(8)]
    return o, [f"v_cvt_pk_bf16_f32 v{UO+q}, v{u+7-2*q}, v{u+6-2*q}" for q in range(4)]
class Seq:
    def __init__(self, fl): self.fl = fl; self.last = None; self.lag = 0
    def add(self, ops, lo, hi, after=(), stag=0):
        for k, x in enumerate(ops):
            if x is None: self.lag = 2; continue
            f = F(x, lo, hi, after=list(after)); f.slack = 8 + int(stag * (len(ops) - k))
            if self.last: f.after2.append((self.last, self.lag))
            self.lag = 0; self.fl.append(f); self.last = f
        return self.last
def make_hook():
    def hook(u, vm, fl, CH):
        if u < 0: setup_addr(vm); return
        E = lambda k, d: int(os.environ.get(k, d))
        sq = Seq(fl)
        Z0 = E('Z0', '75')
        vm.add([([f"s_lshl_b32 s{sT0}, s2, {FB}"], f"buffer_store_dwordx4 {vr(T8+4)}, v15, {sr(SRD_FL)}, s{sT0} offen offset:1024 sc1 ;! w=PREP"),
                ([], f"buffer_store_dwordx4 {vr(T8+4)}, v15, {sr(SRD_FL)}, s{sT0} offen sc1 ;! w=PREP"),
                ([f"s_lshl_b32 s{sT0}, s{sH}, 10", f"s_add_u32 s{sT0}, s{sT0}, {KFLAG}", f"s_cmp_eq_u32 s{sJ}, 7\ns_cselect_b32 s{sT0}, s{sT0}, 0x100000"],
                 f"buffer_store_dwordx4 {vr(T8+4)}, v15, {sr(SRD_FL)}, s{sT0} offen sc1 ;! w=ZK")], Z0, Z0 + 60, 2, stream='P', margin=30, after=[vm.setup])
        PZ = [int(x) for x in os.environ.get('PZ', '')]
        if PZ and os.environ.get('PZW', 'b') == 'p':
            pz = []
            for r in range(4): pz = [F(f"v_accvgpr_write_b32 a{244 + r}, -1", 0, E('PZ0', '75') - 4, after=pz)]; fl += pz
            L = []
            for d in PZ:
                pre = [f"s_and_b32 s{sT0}, s2, 3", f"s_lshl_b32 s{sT0}, s{sT0}, 16", f"s_xor_b32 s{sT0}, s{sT0}, 0x{d * 65536 + d * 4096:x}", f"s_lshr_b32 s3, s2, 2", f"s_lshl_b32 s3, s3, 18",
                       f"s_add_u32 s{sT0}, s{sT0}, s3", f"s_lshl_b32 s3, s{sW}, 14", f"s_add_u32 s{sT0}, s{sT0}, s3"]
                if d == PZ[0]: pre = setsrd(PTR['WS'], WS_PART, 16 * MB) + pre
                L += [(pre if i == 0 else [], f"buffer_store_dwordx4 a[244:247], v{vL16}, {R}, s{sT0} offen offset:{i * 1024} sc1 ;! w=PREP") for i in range(4)]
            vm.add(L, E('PZ0', '75'), E('PZ0', '75') + 70, E('PZC', '2'), stream='P', margin=30, after=[vm.setup] + pz)
        def spread(L, wts, P0, P1, after=()):
            ld = []; acc = 0
            for x, w in zip(L, wts):
                lo = int(P0 + (P1 - P0) * acc / sum(wts)); acc += w
                ld += vm.add([x], lo, lo + 100, CH * w, stream='P', margin=60, after=after)
            return ld
        P0, P1, G0, G1 = E('P0', '80'), E('P1', '330'), E('G0', '680'), E('G1', '750')
        ld = spread(loads_u(), [0.5] * 19 + [0.3] * 2, P0, P1)
        vm.add([(setsrd(PTR['DBG'], 0, 256) + [f"s_lshl_b32 s{sT0}, s{sH}, 2", f"s_cmp_eq_u32 s{sJ}, 7\ns_cselect_b32 s{sT0}, s{sT0}, 0x1000"],
                 f"buffer_store_dword v{vONE}, v{vATOM}, {R}, s{sT0} offen sc1 ;! r=ZK")], P1 + 10, P1 + 120, 1, stream='P', margin=60)
        mv = []
        for c in range(4):
            a, b = u_ops(c)
            if c == 0: sq.add(a[:1], 0, G0).after2.append((ld[-1], 60)); a = a[1:]
            b += [f"v_accvgpr_write_b32 a{224 + 4*c + q}, v{UO+q}" for q in range(4)]
            mv = [sq.add(a + b, 0, G0 - 1 - 56 * (3 - c), stag=0.9)]
        tr = []; prev = vm.bar[12]
        for c in range(4):
            w = F(f"ds_write_b128 v{vPM}, {ar(224 + 4*c)} offset:{ASLOT[0] + c * 1024}", 0, 64 * 13, after=mv, pr=-1); w.after2.append((prev, 2)); prev = w; fl.append(w)
        for c in range(4):
            r = F(f"ds_read_b128 {ar(224 + 4*c)}, v{vZ} offset:{ASLOT[0] + c * 1024} ;! w=UT", 0, 64 * 13 + 8, after=[prev], pr=-1); prev = r; fl.append(r); tr.append(r)
        g9 = [g for g in vm.groups if 'w=A9' in g['ops'][0][1].ins[-1].text][0]
        f9 = g9['ops'][0][1]; f9.ins = [I(f9.ins[0].text + " r=UT")]; f9.after2.append((prev, 6)); g9['lo'] += 22
        ld = spread(loads_g(), [1.0] * 4 + [0.3] * 2, G0, G1, after=mv)
        g = sq.add(gate_ops()[:1], 0, 930); g.after2.append((ld[-1], 50))
        last = sq.add(gate_ops()[1:], 0, 930, stag=0.85)
        for f_ in range(8, 16):
            for f in vm.kcv[f_]: f.after.append(last)
        T0, T1 = E('TQ0', '640'), E('TQ1', '880')
        prev = []
        X0, X1, XN = E('XT0', '0'), E('XT1', '600'), E('XTN', '4')
        for k in range(XN if X0 else 0):
            lo = X0 + (X1 - X0) * k // XN
            pre = [f"v_and_b32 v16, {32 // XN - 1}, v{vLANE}", "v_lshlrev_b32 v16, 7, v16"] if k == 0 else []
            vm.add([(pre, f"buffer_load_dword v17, v16, {sr(SRD_X)}, s{sT1} offen offset:{k * 4096 // XN}")], lo, lo + 100, CH * 2, stream='T2', margin=60, after=[vm.setup])
        for k in range(WQN if T0 else 0):
            lo = T0 + (T1 - T0) * k // WQN
            t = vm.add([([], f"global_load_dword v17, v{vQ}, {sr(PTR['WQ'], 2)}")], lo, lo + 100, CH * 2, after=prev, stream='T', margin=60)
            f = F(f"v_add_u32 v{vQ}, 0x{0x10000 // WQN:x}, v{vQ}", lo, lo + 120, after=t, pr=-1); fl.append(f); prev = [f]
        SU = E('SU', '925')
        st = [(setsrd(PTR['WS'], WS_UT, WS_G - WS_UT + 8192) + [f"s_lshl_b32 s{sT0}, s2, 5", f"s_lshl_b32 s{sT1}, s{sW}, 3", f"s_add_u32 s{sT0}, s{sT0}, s{sT1}", f"s_add_u32 s{sT0}, s{sT0}, 0x{WS_G - WS_UT:x}"],
              f"buffer_store_dwordx2 a[240:241], v16, {R}, s{sT0} offen sc1 ;! w=PREP")]
        st += [([f"s_mov_b32 s{sT0}, {c * 8192}"], f"buffer_store_dwordx4 {ar(224 + 4*c)}, v{vU}, {R}, s{sT0} offen sc1 ;! w=PREP") for c in range(4)]
        vm.add(st, SU, 64 * 15 + 2, 5, after=[last] + tr, stream='P', margin=6)
    return hook
```

```python
import sys, os
from attn import *
import ssm, prepf
OUT4 = os.environ.get('OUT4', '1') == '1'
if OUT4: import outp4 as outp
else: import outp
sU0, sD2 = 78, 79
vP32 = 6
polls.t.update(prep=(SRD_DBG, f"v{vP32}", "0", 128, 0, 'eq', vPOLL), ctx=(SRD_FL, f"v{outp.vPX}", "0", 8, 1, 'ne', vPOLL),
               conv=(SRD_FL, f"v{outp.vPC}", "0", 0, 1, 'ne', vPOLL))
if OUT4: polls.t.update(p12=(SRD_FL, f"v{outp.vP12}", f"s{outp.sFL}", 128, 1, 'ne', vPOLL),
                        pzc=(SRD_FL, f"v{outp.vP12}" if len(outp.PZ) == 3 else "off", f"s{outp.sFL}", 128 if len(outp.PZ) == 3 else 128 * (outp.PZ or [0])[0], 1, 'ne', vPOLL))
else: polls.t.update(pair=(SRD_FL, "off", f"s{outp.sWO2}", 0, 1, 'ne', vPOLL))

class Fuse:
    def seq(self, fl, lst, lo, hi, lag=0, after=()):
        sq = prepf.Seq(fl)
        for x in lst:
            if x is not None and lag: sq.lag = max(sq.lag, lag)
            sq.add([x], lo, hi, after=after)
        return sq.last
    def seq2(self, fl, lst, lo, hi):
        sq = prepf.Seq(fl)
        for x in lst: sq.add([x], lo, hi)
        return sq.last
    def ex43(self, fl, d):
        n = d['n']
        a = self.seq(fl, [f"v_and_b32 v{vP32}, 31, v{vLANE}", f"v_lshlrev_b32 v{vP32}, 2, v{vP32}",
                          f"v_and_b32 v14, 60, v{vLANE}", f"v_lshl_add_u32 v{ssm.vUS}, v14, 4, v{vL16}", f"v_subrev_u32 v{ssm.vE0}, 32, v{vL16}"], 0, 14)
        s_ = self.seq(fl, ssm.setup_scalar(sU0, sD2), 0, 84, lag=1, after=[a])
        self.seq(fl, ssm.ops(ssm.setup_vector(sU0, 16)), 0, n - 14, after=[s_])
        d['pre'] += [([([], polls.load("prep"))], [a])]
        if OUT4 and outp.PZ and outp.PZW == 'b': d['pre'] += [outp.pz_clear(fl)]; d['sp'] = int(os.environ.get('PZSP', '3'))
        chk = F(polls.check("prep"), d['gb'] + 1, d['gb'] + 1, cls='B'); fl.append(chk)
        d['end'] += [(ssm.dma_e() + ssm.load_d(sD2), [s_])]
    def ex32(self, fl, d):
        if os.environ.get('OP', 'l') == 'e': d['end'] += [(ssm.dma_o() + ssm.load_63(), [])]
        elif os.environ.get('OP', 'l') in 'tlb':
            d['end'] += [(ssm.load_63(), [])]
            if os.environ.get('OP') == 'b':
                L = ssm.make_o((192, 198, 224, 28), (80, 84, 88, 92)); g0 = int(os.environ.get('OB', '44')); n = d['n']; pw = []
                for q in range(4):
                    r = [F(x, g0 + 4 * q, g0 + 12 + 4 * q) for x in L[2*q:2*q+2]]
                    v = [F(x, 0, n - 14 + 4 * q - 2) for x in L[8+5*q:12+5*q]]
                    for f in v: f.after2 += [(x, 7) for x in r]
                    w = F(L[12+5*q], 0, n - 14 + 4 * q, after=v, cls='G'); w.after2 += [(x, 3) for x in pw]; pw = [w]
                    fl += r + v + [w]
        else: d['mid'] += [(ssm.dma_o(), [])]; d['end'] += [(ssm.load_63(), [])]
        self.seq(fl, ssm.d_ops(16), 50, d['n'] - 1)
    def ex4e(self, fl, d):
        d['mid'] += [([([], f"buffer_load_dword v12, v22, s[8:11], s12 offen")], [])]
        d['aft'] = ["s_add_u32 s12, s12, s13", "s_sub_u32 s13, s13, 0x4000"]
        d['sp'] = 5
    def pre4(self):
        q = Prog(); q(f"s_lshl_b32 s12, s{sH}, 18"); srd(q, 8, PTR['WO'], 12, 0, 262144)
        q(f"s_sub_u32 s12, s{sJ}, 1\ns_lshl_b32 s12, s12, 14\ns_mov_b32 s13, 0x18000\nv_lshlrev_b32 v22, 6, v0")
        return ssm.pairs(q)
    def tail_dma(self): return [y for pre, x in ssm.load_u(sU0) + (ssm.dma_o() if os.environ.get('OP') == 't' else []) for y in pre + [x]]
    def tail_stage(self): return ssm.make_o() if os.environ.get('OP', 'l') == 'l' else []
    def tail_reads(self):
        q = Prog(); ssm.first_reads(q); return q.items

def build(stamps):
    p = Prog()
    if os.environ.get('DIAG', 's')[0] != 's': p("s_memrealtime s[4:5]\ns_memtime s[6:7]\ns_waitcnt lgkmcnt(0)\nv_writelane_b32 v23, s4, 0\nv_writelane_b32 v23, s6, 1")
    p.note('''Generated by gen/fused.py (hand-written generators, see gen/*.py). One workgroup per CU, four waves, bf16 16x16x32 MFMA throughout.
    Phase 1: K/V projection (256 keys of head h) and Q projection (row blocks j and 15-j) as one static MFMA stream.
    The gaps carry the short conv / k*v product, the gate, the K/V fragment stores and prefetches.''')
    setup(p)
    st = Stamps(stamps)
    if stamps: p("v_mov_b32 v23, 0")
    gemm_stream(p, st, hook=prepf.make_hook(), endhook=lambda fl, bar, vm: (gemm_end(fl, bar, vm), Fuse().seq(fl, Fuse().pre4(), 64 * 27, 64 * 29, lag=1)))
    st(p, '1ga')
    p.note('''Phase 2: causal attention. Scores are in log2 units. The row maximum over the first 16 keys is subtracted through the MFMA C operand;
    every row sum is checked at the end (must stay below 2^60) and a wave that fails redoes its rows with the true row maximum (L_slow).''')
    attention(p, st, Fuse())
    st(p, '1t')
    p("L_slow_ret:")
    E = lambda k, d: int(os.environ.get(k, d))
    NC, EC = E('NC', '3' if OUT4 else '2'), E('EC', '190' if OUT4 else '240')
    def extra(fl, n):
        for g in ([int(x) for x in os.environ['CU'].split(',')] if os.environ.get('CU') else (0, 62, 160, n - 24)): st.fill(fl, g, 't')
        vm = VM(fl); CC = float(os.environ.get('CC', '4'))
        GS = E('GSIG', '80' if DEF3 else '44')
        b2 = F("s_barrier ;! r=CST", GS, GS, cls='B'); fl.append(b2)
        if DEF3:
            R = attn_tail.rest; rd = {}
            for f_ in range(4):
                blk = R[22 * f_:22 * f_ + 22]
                r = [F(i.text, 0, 12 + 5 * f_, pr=-3) for i in blk[:8]]
                for f in r: rd[f.ins[0].reads[0]] = f
                m = [F(i.text, 0, GS - 30 + 4 * f_, after=[r[k]], pr=f_) for k, i in enumerate(blk[8:16])]
                c = [F(i.text, 0, GS - 28 + 4 * f_, after=m[2*k:2*k+2], pr=f_) for k, i in enumerate(blk[16:20])]
                fl += r + m + c
                vm.add([([blk[20].text], blk[21].text)], 20 + 6 * f_, GS, 3, stream='X', margin=4)[0].after += c
            for f in fl:
                if f.cls == 'D' and f.lo < 44: f.after += [rd[w] for w in f.ins[0].writes if w in rd]
        q = Prog(); outp.out_setup(q)
        su = Fuse().seq2(fl, ssm.pairs(q), 0, GS)
        s2a, s2b = outp.out_setup2()
        su2 = Fuse().seq(fl, s2a, 46, EC - 55, lag=1, after=[su])
        Fuse().seq(fl, s2b, 46, 228, lag=1, after=[su2, b2])
        G0_, G1_, G3 = [int(x) for x in os.environ.get('CG', '120,172,226').split(',')]
        vm.add([([], f"buffer_store_dword v{vONE}, v{vATOM}, {sr(SRD_FL)}, s{sLF} offen offset:8 sc1")], GS + 1, GS + 12, 1, after=[b2], margin=6)
        CT4 = E('CT4', '0')
        if CT4: touch_fill(fl, vm, CT4, "outmain", "codeend", 20, 12, 99)
        for k in range(1, len(HS) if HOP else 0):
            if HS[k][0] >= 10000: fl.append(F(hop_session(k), HS[k][0] - 10000, HS[k][0] - 10000, cls='B'))
        half = lambda l: (l[:4], l[4:])
        if OUT4:
            for u in range(4): vm.add(outp.dmaW(u), GS + 1, 200 + u, 5, after=[b2, su], stream='W')
            gw = 170 if outp.MERGE else 262
            bw = F("s_barrier ;! r=OW0", gw, gw, cls='B'); fl.append(bw)
            for k in range(4 * outp.NPRE): fl.append(F(outp.rdW(k >> 2, (k >> 1) & 1, k & 1), gw + 1, n - 1, after=[bw, su2]))
        else:
            bar = {}
            for u, g in ((0, G0_), (1, G1_)):
                for h in half(outp.dmaW(u)): vm.add(h, GS + 1, g, 4, after=[b2, su], stream='W')
                bar[u] = F(f"s_barrier ;! r=OW{u}" + (",RW0" if u else ""), g, g, cls='B'); fl.append(bar[u])
                for k in range(32): fl.append(F(outp.rdW(8 * u + (k >> 2), (k >> 1) & 1, k & 1), g + 1, g + 18 + k, after=[bar[u]], pr=0))
            b3 = F("s_barrier ;! r=RW1", G3, G3, cls='B'); fl.append(b3)
            for h in half(outp.dmaW(2)): vm.add(h, G1_ + 1, n + 60, CC, after=[bar[1]], stream='W', margin=0)
            for h in half(outp.dmaW(3)): vm.add(h, G3 + 1, n + 124, CC, after=[b3], stream='W', margin=0)
        pl = vm.add([([], polls.load("ctx"))], EC - 50, EC, 2, after=[su2], margin=30)
        chk = F(polls.inline("ctx"), EC, EC, after=pl, cls='B'); fl.append(chk)
        for u in range(NC):
            for h in half(outp.ldC(u)): vm.add(h, EC + 1, n + 20 + 64 * u, CC, after=[chk], stream='C', margin=0)
        vm.emit(t0=0)
        extra.rest = []
        for (pre, f), t, g, lat in vm.order:
            for x in pre + [f]:
                if f.lo >= n - 2: fl.remove(x); extra.rest += x.ins
    def post(p): p.add(extra.rest)
    st(p, '1t')
    outp.CONV_TAIL = ssm.conv_compute(p, extra, post, st, merge=OUT4 and outp.MERGE)
    st(p, '1te')
    def mid(fl):
        gy = E('GY', '200') if OUT4 and outp.MERGE else 50
        b = F(f"s_barrier ;! r=YST{outp.TAG if OUT4 and outp.MERGE else ''}", gy, gy, cls='B'); fl.append(b)
        sig = ([f"s_lshl_b32 s98, s2, {FB}"], f"buffer_store_dword v{vONE}, v{vATOM}, {sr(SRD_FL)}, s98 offen sc1")
        pl = ([], polls.load("conv"))
        return [(gy + 60, gy + 1, [sig], [b]), (outp.GE, outp.GE - 98, [pl], [])] if OUT4 else [(64 * 4 - 30, 51, [sig], [b]), (64 * 11 + 1, 64 * 7, [pl], [])]
    p("L_outmain:")
    outp.out_main(p, 4, NC, st, mid=mid)
    st(p, '1te')
    outp.out_epilogue(p, st)
    if stamps: p("s_waitcnt vmcnt(0)")
    st.finish(p)
    D = os.environ.get('DIAG')
    if D:
        p("s_memrealtime s[0:1]\ns_memtime s[4:5]\ns_waitcnt lgkmcnt(0)\nv_readlane_b32 s6, v23, 0\nv_readlane_b32 s7, v23, 1")
        if D[0] == 'c': p(f"s_mov_b32 s8, {int(D[1:])}")
        if D[0] == 'd': p("s_sub_u32 s8, s0, s6\ns_mul_i32 s8, s8, 8")
        if D[0] == 's': p(f"v_readlane_b32 s6, v23, 13\nv_readlane_b32 s8, v23, {int(D[1:])}\ns_sub_u32 s8, s8, s6\ns_mul_i32 s8, s8, 16")
        if D[0] == 'x': p(f"s_getreg_b32 s8, hwreg(HW_REG_XCC_ID)\ns_sub_u32 s8, s8, s2\ns_and_b32 s8, s8, {int(D[1:])}\ns_mul_i32 s8, s8, 5000\ns_add_u32 s8, s8, 20000")
        if D[0] == 'y': p("s_sub_u32 s8, s4, s7\ns_lshr_b32 s8, s8, 1")
        if os.environ.get('DM'):
            m, v = os.environ['DM'].split(',')
            p(f"s_and_b32 s9, s2, {m}\ns_cmp_eq_u32 s9, {v}\ns_cselect_b32 s8, s8, 0")
        p("L_diag:\ns_memrealtime s[0:1]\ns_waitcnt lgkmcnt(0)\ns_sub_u32 s0, s0, s6\ns_cmp_lt_u32 s0, s8\ns_cbranch_scc1 L_diag")
    p("L_end:\ns_endpgm")
    for x in polls.ool: emit(p, x)
    p("L_codeend:")
    slow_path(p, lambda q: ssm.first_reads(q, False))
    X = os.environ.get('ABL2', '')
    def drop(i):
        if not isinstance(i, I): return False
        t = i.text
        if 'e' in X and 'w=ST' in t: return True
        if 'l' in X and 'w=SL' in t: return True
        if 'c' in X and 'w=CST' in t and 'KEEP' not in t: return True
        if 'p' in X and 'w=PST' in t: return True
        if 'P' in X and 'w=PST3' in t: return True
        if 'Q' in X and ('w=PST3' in t or 'w=PST1' in t): return True
        if 'y' in X and 'w=YST' in t: return True
        if 'q' in X and i.kind == 'vld' and 's[4:7], s36' in t: return True
        return False
    if X:
        p.items = [I("HINT ;!" + i.text.split(';!')[1]) if drop(i) and ';!' in i.text else i for i in p.items if not (drop(i) and ';!' not in i.text)]
    p.finalize()
    if os.environ.get('HB', '1') == '1':
        its = p.items; n = 0
        for k in range(2, len(its) - 1):
            w, b, m = its[k], its[k + 1], its[k - 1]
            if not (isinstance(w, I) and isinstance(b, I) and isinstance(m, I) and w.kind == 'wait' and b.op == 's_barrier' and m.kind == 'mfma' and 'lgkm' not in w.text): continue
            j = k - 2; dv = 0
            while isinstance(its[j], I) and its[j].kind not in ('mfma', 'branch', 'misc') and k - j < 6:
                dv += its[j].kind in ('dma', 'vld', 'vst'); j -= 1
            v = int(re.search(r'vmcnt\((\d+)\)', w.text).group(1)) - dv
            if not (isinstance(its[j], I) and its[j].kind == 'mfma') or v < 0: continue
            nx = its[j + 1]
            if nx.kind == 'wait' and 'vmcnt' not in nx.text: its[j + 1] = I(f"s_waitcnt vmcnt({v}) " + nx.text.split()[1]); its[k] = I("HINT")
            elif nx.kind in ('salu', 'wait', 'nop'): continue
            else: del its[k]; its.insert(j + 1, I(f"s_waitcnt vmcnt({v})"))
            n += 1
        print("; barrier waits hoisted", n)
        p.finalize()
    if os.environ.get('JITTER'):
        import random
        rnd = random.Random(int(os.environ['JITTER'])); out = []; its = p.items; n = 0
        def scc_dead(k):
            for i in its[k:]:
                if isinstance(i, Label): return False
                if not isinstance(i, I): continue
                if i.op.startswith(('s_cbranch', 's_cselect', 's_addc', 's_branch', 's_endpgm')): return False
                if i.kind == 'salu' and i.op not in NOSCC: return True
            return False
        for k, i in enumerate(its):
            hit = isinstance(i, I) and (i.op == 's_barrier' or (i.kind == 'mfma' and rnd.random() < 0.01)) and scc_dead(k + 1)
            def jit():
                nonlocal n
                n += 1
                if os.environ.get('JW'):
                    if rnd.random() > 0.12: return []
                    return [I(f"s_bitcmp1_b32 0x{rnd.getrandbits(32) & rnd.getrandbits(32):x}, {rnd.choice(('s2', 's29', 's30'))}"), I(f"s_cbranch_scc0 L_jit{n}")] + [I("s_sleep 127")] * rnd.randint(1, 4) + [Label(f"L_jit{n}")]
                return [I(f"s_bitcmp1_b32 {rnd.randint(1, 14)}, s28"), I(f"s_cbranch_scc0 L_jit{n}"), I(f"s_sleep {rnd.choice((2, 5, 10, 20))}"), Label(f"L_jit{n}")]
            if hit and rnd.random() < 0.5: out += jit()
            out.append(i)
            if hit and rnd.random() < 0.7: out += jit()
        p.items = out; print("; jitter sites", n)
    return p

if __name__ == "__main__":
    import subprocess, re
    TF = os.environ.get("TMPF", "_f")
    p = build(bool(os.environ.get('STAMP')))
    LLVM = "bin/"
    def assemble():
        txt = module([(NAME + "_kernel", p, 256, 256, 163840, 512, 256)])
        txt = "\n".join(l.split(" ;!")[0].split(" ;hop")[0] for l in txt.split("\n"))
        open(TF + ".s", "w").write(re.sub(r"NL(\d+)_(\w+?)__(\w+?)_MAX", "0x1234", re.sub(r"NL(\d+)_(\w+?)__(\w+?)_P(ER|M1)", "7", txt)))
        subprocess.run([LLVM + "clang", "-x", "assembler", "-target", "amdgcn-amd-amdhsa", "-mcpu=gfx950", "-c", TF + ".s", "-o", TF + ".o"], check=True)
        sym = {l.split()[-1]: int(l.split()[1], 16) for l in subprocess.run([LLVM + "llvm-readelf", "-s", TF + ".o"], capture_output=True, text=True).stdout.split("\n") if " L_" in l}
        return txt, sym
    if HOP:
        its = p.items; tmp = []
        for k, i in enumerate(its):
            if isinstance(i, I): tmp.append(Label(f"L_i{k}"))
            tmp.append(i)
            if isinstance(i, I): tmp.append(Label(f"L_e{k}"))
        p.items = tmp; _, sy = assemble()
        out = []; pos = None; pads = []; inloop = False; NP = max(x[1] for x in HS if x[1] < 90); SITES = ['L_last4', 'L_after4', 'L_ev2', 'L_hook2']
        for k, i in enumerate(its):
            if isinstance(i, Label):
                if i.name == "L_pg0": pos = 0
                elif pos is not None and i.align: pos = -(-pos >> i.align) << i.align
                if i.name in ("L_loop4", "L_loop2"): inloop = True
                if i.name in ("L_ev4", "L_ev2"): inloop = False
                if i.name == "L_end": pos = None
            out.append(i)
            if isinstance(i, Label) and i.name in SITES and HS[-1][1] == 99:
                pg = 90 + SITES.index(i.name); pads.append(pg); out += [Label(f"L_pad{pg}"), I(f"s_cbranch_execz NEXT{pg}")]; pos += 4
            if isinstance(i, I) and pos is not None:
                pos += sy[f"L_e{k}"] - sy[f"L_i{k}"]
                land = pos + (4 if HOP == 1 else 0); pg = land >> 12
                nxt = its[k + 1] if k + 1 < len(its) else None
                ok = isinstance(nxt, I) and i.op != 's_getpc_b64' and 'exec' not in i.text and ';hop' not in i.text and ';hop' not in nxt.text and (i.kind == 'mfma' or (land & 4095) >= 44)
                if 1 <= pg <= NP and pg not in pads and (land & 4095) < 60 and ok and not (inloop and (HOP == 1 or os.environ.get('NLP'))):
                    pads.append(pg)
                    if HOP == 1: out += [I(f"s_branch L_sk{pg}"), Label(f"L_pad{pg}"), I(f"s_branch NEXT{pg}"), Label(f"L_sk{pg}")]; pos += 8
                    else: out += [Label(f"L_pad{pg}"), I(f"s_cbranch_execz NEXT{pg}")]; pos += 4
        ses = [[g for g in pads if (HS[k - 1][1] if k else 0) < g <= HS[k][1]] for k in range(len(HS))]
        for k, i in enumerate(out):
            if not isinstance(i, I): continue
            m = re.search(r"NEXT(\d+)", i.text)
            if m:
                z = [z for z in range(len(ses)) if int(m.group(1)) in ses[z]][0]; n = ses[z].index(int(m.group(1))) + 4
                out[k] = I(i.text.replace(m.group(0), f"L_pad{ses[z][n]}" if n < len(ses[z]) else f"L_hr{z}"))
            m = re.search(r";hop(\d)_(\d)", i.text)
            if m and int(m.group(2)) < len(ses[int(m.group(1))]): out[k] = I(i.text.replace(f"L_hr{m.group(1)}", f"L_pad{ses[int(m.group(1))][int(m.group(2))]}"))
        p.items = out
    txt, sym = assemble()
    if HOP:
        assert all(0 <= sym[f"L_pad{g}"] - sym["L_pg0"] - 4096 * g < 64 for g in pads if g < 90), [(g, sym[f"L_pad{g}"] - sym["L_pg0"] - 4096 * g) for g in pads]
        print("; pads", pads)
    def rep(m):
        nl = (sym["L_" + m.group(3)] - sym["L_" + m.group(2)] - 64) // 128 + 1
        per = (nl + int(m.group(1)) - 1) // int(m.group(1)); assert per <= 32 and nl > 65
        return str({'PER': per, 'PM1': per - 1, 'MAX': nl - 1}[m.group(4)])
    txt = re.sub(r"NL(\d+)_(\w+?)__(\w+?)_(PER|PM1|MAX)", rep, txt)
    for a, b in re.findall(r"(L_\w+)-(L_pc\d+)", txt): assert sym[a] > sym[b], "code prefetch targets must lie ahead"
    print("; code bytes", sym["L_codeend"])
    open(sys.argv[1], "w").write(txt)
```

```python
import re

REG_RE = re.compile(r'^(-|abs\()?([vas])(\d+)\)?$')
RNG_RE = re.compile(r'^(-)?([vas])\[(\d+):(\d+)\]$')

def regs_of(op):
    op = op.strip()
    m = RNG_RE.match(op)
    if m: return [f"{m.group(2)}{i}" for i in range(int(m.group(3)), int(m.group(4)) + 1)]
    m = REG_RE.match(op)
    if m: return [f"{m.group(2)}{m.group(3)}"]
    if op in ('vcc', 'exec', 'm0', 'scc'): return [op]
    if op in ('vcc_lo', 'vcc_hi'): return ['vcc']
    if op in ('exec_lo', 'exec_hi'): return ['exec']
    return []

TRANS = ('v_exp_f32', 'v_log_f32', 'v_rcp_f32', 'v_rsq_f32', 'v_sqrt_f32')

class I:
    def __init__(self, text, note=None):
        self.text = text.strip()
        self.note = note
        t = self.text.split(';')[0].strip()
        parts = t.split(None, 1)
        self.op = parts[0]
        rest = parts[1] if len(parts) > 1 else ''
        ops = [o.strip() for o in rest.split(',')] if rest else []
        mods = []
        if ops:
            last = ops[-1].split()
            ops[-1] = last[0]; mods = last[1:]
        self.ops, self.mods = ops, mods
        op = self.op
        R = lambda lst: [r for o in lst for r in regs_of(o)]
        self.reads, self.writes = [], []
        self.srcc = []
        if op.startswith('v_mfma'):
            self.kind = 'mfma'; self.writes = R(ops[:1]); self.reads = R(ops[1:]); self.srcc = R(ops[3:4]); self.srcab = R(ops[1:3])
            self.passes = 4 if '16x16x32' in op else 8
        elif op.startswith('v_smfmac'):
            self.kind = 'mfma'; self.writes = R(ops[:1]); self.reads = R(ops); self.srcc = R(ops[:1]); self.srcab = R(ops[1:4])
            self.passes = 4
        elif op.startswith('ds_read'):
            self.kind = 'dsr'; self.writes = R(ops[:1]); self.reads = R(ops[1:])
        elif op.startswith('ds_write'):
            self.kind = 'dsw'; self.reads = R(ops)
        elif op.startswith('ds_bpermute') or op.startswith('ds_swizzle'):
            self.kind = 'dsr'; self.writes = R(ops[:1]); self.reads = R(ops[1:])
        elif op.startswith('buffer_load') and 'lds' in mods:
            self.kind = 'dma'; self.reads = R(ops) + ['m0']
        elif op.startswith('buffer_load') or op.startswith('global_load'):
            self.kind = 'vld'; self.writes = R(ops[:1]); self.reads = R(ops[1:])
        elif op.startswith('buffer_store'):
            self.kind = 'vst'; self.reads = R(ops); self.data = R(ops[:1])
        elif op.startswith('global_store'):
            self.kind = 'vst'; self.reads = R(ops); self.data = R(ops[1:2])
        elif op.startswith('buffer_atomic') or op.startswith('global_atomic'):
            self.kind = 'vst'; self.reads = R(ops); self.data = []
            assert 'sc0' not in mods
        elif op.startswith('buffer_inv') or op.startswith('buffer_wbl2'):
            self.kind = 'vst'; self.data = []
        elif op.startswith('s_load') or op in ('s_memtime', 's_memrealtime'):
            self.kind = 'smem'; self.writes = R(ops[:1]); self.reads = R(ops[1:])
        elif op == 'HINT': self.kind = 'hint'; self.reads = R(ops)
        elif op == 's_waitcnt': self.kind = 'wait'
        elif op == 's_nop': self.kind = 'nop'
        elif op in ('s_barrier', 's_endpgm', 's_setprio', 's_sleep'): self.kind = 'misc'
        elif op.startswith('s_cbranch') or op == 's_branch':
            self.kind = 'branch'
            if 'vcc' in op: self.reads = ['vcc']
        elif op.startswith(('s_cmp', 's_bitcmp')):
            self.kind = 'salu'; self.reads = R(ops)
        elif op.startswith('s_'):
            self.kind = 'salu'; self.writes = R(ops[:1]); self.reads = R(ops[1:])
            if 'saveexec' in op: self.writes.append('exec')
            if op in ('s_addk_i32',): self.reads += self.writes
        elif op.startswith('v_'):
            self.kind = 'valu'
            if op.startswith('v_permlane') and 'swap' in op:
                self.writes = R(ops[:2]); self.reads = R(ops[:2])
            elif op.startswith(('v_add_co', 'v_addc_co', 'v_sub_co')):
                self.writes = R(ops[:2]); self.reads = R(ops[2:])
            else:
                self.writes = R(ops[:1]); self.reads = R(ops[1:])
                if op.startswith(('v_fmac', 'v_writelane')): self.reads += self.writes
                if any(m.startswith(('row_', 'quad_perm', 'wave_', 'dst_sel')) for m in mods): self.reads += self.writes
        else:
            raise ValueError("unknown instruction: " + text)
        m = re.search(r';!(.*)$', self.text)
        if m:
            for part in m.group(1).split():
                key, val = part.split('=')
                toks = ['T' + x for x in val.split(',')]
                if key == 'w': self.writes = self.writes + toks
                if key == 'r': self.reads = self.reads + toks
        self.trans = op in TRANS or op.replace('_e32', '').replace('_e64', '') in TRANS
        self.dpp = any(m.startswith(('row_', 'quad_perm', 'wave_')) for m in mods)
        self.sdwa = 'sdwa' in op or any(m.startswith(('dst_sel', 'op_sel')) for m in mods)
    def size(self):
        if self.kind == 'hint' or ';@' in self.text: return 0
        if self.kind in ('mfma', 'dsr', 'dsw', 'dma', 'vld', 'vst', 'smem'): return 8
        lit = any(re.match(r'^(0x[0-9a-f]+|\d+)$', o) and int(o, 0) > 64 for o in self.ops) and self.kind in ('valu', 'salu')
        if self.kind == 'valu' and (self.dpp or len(self.ops) >= 4 and self.ops[3] != 'vcc' or self.op.startswith(('v_cvt_pk', 'v_accvgpr', 'v_mul_lo', 'v_readlane', 'v_writelane')) or (self.op.startswith('v_cmp') and self.ops[0] != 'vcc')): return 8
        return 8 if lit else 4
    def states(self):
        return int(self.ops[0], 0) + 1 if self.kind == 'nop' else (0 if self.kind == 'hint' else 1)
    def __str__(self):
        return self.text

class Label:
    def __init__(self, name, align=None): self.name = name; self.align = align
class Raw:
    def __init__(self, text): self.text = text

BIG = 1 << 20
class State:
    def __init__(self):
        self.lg = {}; self.vm = {}
        self.hz = {}
    def copy(self):
        s = State(); s.lg = dict(self.lg); s.vm = dict(self.vm); s.hz = dict(self.hz); return s
    def merge(self, o):
        ch = False
        for a, b in ((self.lg, o.lg), (self.vm, o.vm), (self.hz, o.hz)):
            for k, v in b.items():
                if k not in a or v < a[k]: a[k] = v; ch = True
        return ch

def need_states(st, ins):
    need = 0
    def req(tag, regs, n):
        nonlocal need
        for r in regs:
            a = st.hz.get((tag, r))
            if a is not None and n - a > need: need = n - a
    k = ins.kind
    if k == 'mfma':
        req('valu', ins.reads, 2)
        req('m4', ins.srcab, 8); req('m8', ins.srcab, 12)
        for r in ins.srcc:
            for tag, n in (('m4', 6), ('m8', 10)):
                a = st.hz.get((tag, r))
                if a is not None and st.hz.get(('mtup', tuple(ins.srcc))) != a and n - a > need: need = n - a
        req('vexec', ['exec'], 4)
    elif k == 'valu':
        req('m4', ins.reads + ins.writes, 8); req('m8', ins.reads + ins.writes, 12)
        req('c4', ins.writes, 3); req('c8', ins.writes, 7)
        if not ins.trans: req('trans', ins.reads, 1)
        req('sdwa', ins.reads + ins.writes, 1)
        req('vsgpr', ins.reads, 2)
        if ins.op.startswith(('v_cndmask', 'v_addc')) and len(ins.ops) < 4: req('vsgpr', ['vcc'], 2)
        req('stdata', ins.writes, 2)
        if ins.op.startswith(('v_readfirstlane', 'v_readlane')): req('valu', ins.reads, 1)
        if ins.op.startswith(('v_readlane', 'v_writelane')): req('vsgpr', ins.reads, 4)
        if ins.op.startswith('v_permlane') or ins.dpp: req('valu', ins.reads, 2)
    elif k in ('dsr', 'dsw', 'dma', 'vld', 'vst'):
        req('m4', ins.reads + ins.writes, 8); req('m8', ins.reads + ins.writes, 12)
        req('stdata', ins.writes, 1)
        if k in ('dma', 'vld', 'vst'): req('vsgpr', ins.reads, 5)
        if k == 'dma': req('sm0', ['m0'], 1)
    elif k in ('salu', 'branch', 'smem'):
        req('vsgpr', ins.reads, 3)
    return need

def advance(st, ins):
    n = ins.states()
    for key in list(st.hz):
        st.hz[key] += n
        if st.hz[key] > 24: del st.hz[key]
    k = ins.kind
    def clr(regs):
        for r in regs:
            for tag in ('valu', 'trans', 'sdwa'): st.hz.pop((tag, r), None)
    if k == 'mfma':
        p = ins.passes
        clr(ins.writes)
        for r in ins.writes: st.hz[(f'm{p}', r)] = 0
        st.hz[('mtup', tuple(ins.writes))] = 0
        for r in ins.srcc: st.hz[(f'c{p}', r)] = 0
    elif k == 'valu':
        clr(ins.writes)
        for r in ins.writes:
            if r[0] in 'va' and r != 'vcc':
                st.hz[('valu', r)] = 0
                if ins.trans: st.hz[('trans', r)] = 0
                if ins.sdwa: st.hz[('sdwa', r)] = 0
            elif r == 'exec': st.hz[('vexec', r)] = 0
            else: st.hz[('vsgpr', r)] = 0
    elif k == 'salu':
        for r in ins.writes:
            st.hz.pop(('vsgpr', r), None)
            if r == 'm0': st.hz[('sm0', 'm0')] = 0
    if k == 'vst' and len(ins.data) >= 3:
        for r in ins.data: st.hz[('stdata', r)] = 0
    if k in ('dsr', 'dsw'):
        for r in st.lg: st.lg[r] += 1
        for r in ins.writes: st.lg[r] = 0
    if k == 'smem':
        for r in st.lg: st.lg[r] = -BIG
        for r in ins.writes: st.lg[r] = -BIG
    if k in ('dma', 'vld', 'vst'):
        for r in st.vm: st.vm[r] += 1
        for r in ins.writes: st.vm[r] = 0
    if k == 'wait':
        m = re.search(r'lgkmcnt\((\d+)\)', ins.text)
        if m:
            n = int(m.group(1))
            for r in list(st.lg):
                if st.lg[r] >= n or n == 0: del st.lg[r]
        m = re.search(r'vmcnt\((\d+)\)', ins.text)
        if m:
            n = int(m.group(1))
            for r in list(st.vm):
                if st.vm[r] >= n or n == 0: del st.vm[r]

def need_waits(st, ins):
    lg = vm = None
    for r in ins.reads + ins.writes:
        if r in st.lg:
            if ins.kind in ('dsr', 'dsw') and r in ins.writes and r not in ins.reads and st.lg[r] >= 0: pass
            else:
                v = min(max(st.lg[r], 0), 15); lg = v if lg is None else min(lg, v)
        if r in st.vm:
            if ins.kind in ('vld', 'dma', 'vst') and r in ins.writes and r not in ins.reads: pass
            else:
                v = min(st.vm[r], 63); vm = v if vm is None else min(vm, v)
    return lg, vm

class Prog:
    def __init__(self):
        self.items = []
    def __call__(self, text):
        for line in text.split('\n'):
            line = line.strip()
            if not line or line.startswith(';'): continue
            if line.endswith(':'): self.items.append(Label(line[:-1]))
            elif line.startswith('.'): self.items.append(Raw(line))
            else: self.items.append(I(line))
    def add(self, x):
        if isinstance(x, str): self(x)
        elif isinstance(x, list):
            for y in x: self.add(y)
        else: self.items.append(x)
    def note(self, text):
        for l in text.strip().split('\n'): self.items.append(Raw('; ' + l.strip()))
    def add_sched(self, code):
        for ins in code:
            m = re.search(r';@(\w+)', ins.text)
            if m: self.label(m.group(1))
            else: self.items.append(ins)
    def label(self, name, align=None): self.items.append(Label(name, align))

    def finalize(self, verbose=True):
        self.check_tokens()
        items = self.items
        nins = {'wait': 0, 'nop': 0}
        for rnd in range(200):
            idx = {it.name: i for i, it in enumerate(items) if isinstance(it, Label)}
            entry = {0: State()}
            work = [0]
            problem = None
            problems = {}
            while work:
                i = work.pop()
                st = entry[i].copy()
                first = True
                while i < len(items):
                    it = items[i]
                    if isinstance(it, Label) and not first:
                        if i not in entry: entry[i] = st.copy(); work.append(i)
                        elif entry[i].merge(st): work.append(i)
                        break
                    first = False
                    if isinstance(it, I):
                        lg, vm = need_waits(st, it)
                        ns = need_states(st, it)
                        if lg is not None or vm is not None or ns > 0:
                            p = problems.setdefault(i, [None, None, 0])
                            if lg is not None: p[0] = lg if p[0] is None else min(p[0], lg)
                            if vm is not None: p[1] = vm if p[1] is None else min(p[1], vm)
                            p[2] = max(p[2], ns)
                            w = 's_waitcnt ' + (f'vmcnt({vm}) ' if vm is not None else '') + (f'lgkmcnt({lg})' if lg is not None else '')
                            if lg is not None or vm is not None:
                                hz = dict(st.hz); advance(st, I(w)); st.hz = hz
                            if ns > 0 and lg is None and vm is None: advance(st, I(f's_nop {ns-1}'))
                        advance(st, it)
                        if it.kind == 'branch':
                            t = idx[it.ops[0]]
                            if t not in entry: entry[t] = st.copy(); work.append(t)
                            elif entry[t].merge(st): work.append(t)
                            if it.op == 's_branch': break
                        if it.op == 's_endpgm': break
                    i += 1
            if not problems: break
            anyw = any(p[0] is not None or p[1] is not None for p in problems.values())
            for i in sorted(problems, reverse=True):
                lg, vm, ns = problems[i]
                if lg is not None or vm is not None:
                    j = i; dl = dv = 0; k = i - 1; ok = False
                    tgt = items[i]
                    while k >= 0 and i - k <= 4 and isinstance(items[k], I) and items[k].kind != 'branch':
                        if items[k].kind == 'mfma': ok = True; break
                        if items[k].kind in ('dsr', 'dsw'): dl += 1
                        if items[k].kind in ('dma', 'vld', 'vst'): dv += 1
                        if items[k].kind in ('smem', 'misc'): break
                        k -= 1
                    if ok and (lg is None or lg - dl >= 0) and (vm is None or vm - dv >= 0) and not (lg == 15 and dl):
                        j = k + 1
                        if lg is not None: lg -= dl
                        if vm is not None: vm -= dv
                    prev = items[j] if j < len(items) and isinstance(items[j], I) and items[j].kind == 'wait' and j < i else None
                    if prev is None and j == i and isinstance(items[j-1], I) and items[j-1].kind == 'wait': prev = items[j-1]; j -= 1
                    if prev is not None:
                        m = re.search(r'lgkmcnt\((\d+)\)', prev.text)
                        if m: lg = int(m.group(1)) if lg is None else min(lg, int(m.group(1)))
                        m = re.search(r'vmcnt\((\d+)\)', prev.text)
                        if m: vm = int(m.group(1)) if vm is None else min(vm, int(m.group(1)))
                    w = I('s_waitcnt ' + (f'vmcnt({vm}) ' if vm is not None else '') + (f'lgkmcnt({lg})' if lg is not None else ''))
                    if prev is not None: items[j] = w
                    else: items.insert(j, w); nins['wait'] += 1
                elif not anyw:
                    items.insert(i, I(f's_nop {ns-1} ; hz')); nins['nop'] += 1
        else:
            raise RuntimeError("no fixpoint")
        if verbose: print(f"; finalize: inserted {nins}")
    def rename(self, a, b):
        for k, it in enumerate(self.items):
            if isinstance(it, Label) and it.name.startswith(a): it.name = b + it.name[len(a):]
            if isinstance(it, I) and it.kind == 'branch' and it.ops[0].startswith(a): self.items[k] = I(it.text.replace(a, b))
    def check_tokens(self, ignore=()):
        seen_r, seen_w = {}, set()
        for it in self.items:
            if not isinstance(it, I): continue
            for r in it.reads:
                if r[0] == 'T':
                    if r not in seen_w: raise RuntimeError(f"token {r} read before any write: {it.text}")
                    seen_r[r] = it
            for r in it.writes:
                if r[0] == 'T':
                    if r in seen_r and r[1:] not in ignore: raise RuntimeError(f"token {r} written after read: {it.text}")
                    seen_w.add(r)
    def text(self):
        out = []
        for it in self.items:
            if isinstance(it, Label):
                if it.align: out.append(f".p2align {it.align}")
                out.append(it.name + ':')
            elif isinstance(it, I) and it.kind == 'hint': pass
            else: out.append('  ' + it.text)
        return '\n'.join(out) + '\n'

class F:
    def __init__(self, text, lo=0, hi=BIG, after=(), lag=1, cls=None, pr=None):
        self.ins = [I(t) for t in text.split('\n') if t.strip()]
        self.lo, self.hi, self.after, self.lag = lo, hi, list(after), lag
        k = self.ins[-1]
        self.cls = cls or ('E' if k.trans else {'valu': 'V', 'dsr': 'D', 'dsw': 'D', 'dma': 'G', 'vld': 'G', 'vst': 'G'}.get(k.kind, 'S'))
        self.nins = len([i for i in self.ins if ';@' not in i.text])
        self.gap = None
        self.after2 = []
        self.pr = hi if pr is None else pr

def schedule(mfmas, fillers, keep_empty=(), wide=(), verbose=None, horizon=48, nos=(), quiet=False, rate=None):
    n = len(mfmas)
    out = []
    for k, f in enumerate(fillers): f.seq = k
    future = sorted(fillers, key=lambda f: -f.lo)
    byhi = sorted([f for f in fillers if f.cls in 'EDGB'], key=lambda f: f.hi)
    pend = []
    over = 0
    pattern = []
    narrow = set(g for g in range(n) if mfmas[g].startswith('v_smfmac'))
    cap = lambda g: 0 if g in keep_empty or g in narrow else (2 if g in wide else 1)
    credit = 0
    for g in range(n):
        out.append(I(mfmas[g]))
        if rate: credit = min(credit + rate - 9, 48)
        while future and (future[-1].lo <= g or g == n - 1): pend.append(future.pop())
        def ready(f):
            return f.lo <= g and all(a.gap is not None and a.gap + f.lag <= g for a in f.after) and all(a.gap is not None and a.gap + l <= g for a, l in f.after2)
        chosen = []
        used = {'S': 0, 'D': 0, 'V': 0, 'X': 0, 'B': 0}
        def fits(f):
            c = f.cls
            if c == 'S' and g in nos: return False
            if c == 'S': return used['S'] + f.nins <= 1 or (used['S'] + f.nins <= 2 and used['X'] + used['B'] == 0 and used['D'] + used['V'] <= 1)
            if g in keep_empty or used['B']: return False
            if g in narrow: return c == 'V' and used['V'] == 0 and used['S'] <= 1
            if rate and c == 'V' and f.pr >= 0 and credit <= 0 and not getattr(f, 'opt', False) and f.hi > g + getattr(f, 'slack', 24): return False
            if c == 'B': return used['D'] + used['V'] + used['X'] == 0
            if g in wide and used['V'] == 0:
                if c == 'D' and used['D'] == 0: return True
                if c in 'EG' and used['X'] == 0: return True
            if used['X']: return False
            if used['S'] > 1 and (c in 'EG' or used['D'] + used['V'] >= 1): return False
            if c in 'EG': return used['D'] + used['V'] == 0
            if c == 'D': return used['D'] == 0 and used['V'] <= 1
            return used['D'] + used['V'] < 2
        while True:
            byhi = [f for f in byhi if f.gap is None]
            must = None; slots = 0; d0 = g
            for k, f in enumerate(byhi):
                if f.hi > g + horizon: break
                while d0 < min(f.hi, n - 1): d0 += 1; slots += cap(d0)
                if k + 1 > slots: must = f.hi; break
            pend.sort(key=lambda f: (0 if f.hi <= g else (1 if (must is not None and f.cls in 'EDGB' and f.hi <= must) else 2), f.hi if f.hi <= g or (must is not None and f.hi <= must) else f.pr, f.seq))
            pick = None
            for f in pend:
                if not ready(f): continue
                if fits(f): pick = f; break
                if f.hi <= g:
                    pick = f; over += 1
                    if verbose and verbose.startswith('!'): print(f"; overflow at gap {g}: {f.ins[-1].text}")
                    break
            if pick is None: break
            pick.gap = g; pend.remove(pick); chosen.append(pick)
            credit -= sum(i.size() for i in pick.ins)
            used[{'E': 'X', 'G': 'X'}.get(pick.cls, pick.cls)] += pick.nins if pick.cls == 'S' else 1
        order = {'S': 0, 'B': 1, 'D': 2, 'G': 3, 'E': 4, 'V': 5}
        srt = sorted(chosen, key=lambda f: order[f.cls])
        pos = {id(f): k for k, f in enumerate(srt)}
        if all(pos.get(id(a), -1) < pos[id(f)] for f in srt for a in f.after + [x for x, _ in f.after2]): chosen = srt
        pattern.append(''.join(f.cls for f in chosen) or '-')
        for f in chosen: out += f.ins
    late = [f for f in fillers if f.gap is not None and f.gap > f.hi]
    schedule.late = len(late) + len(pend)
    if not quiet and any(f.cls in 'DVEB' for f in late): raise RuntimeError("register feeder past its deadline: " + [f for f in late if f.cls in 'DVEB'][0].ins[-1].text)
    if late and not quiet: print(f"; WARNING {len(late)} fillers past deadline, e.g. gap {late[0].gap} > {late[0].hi}: {late[0].ins[-1].text}")
    pend = [f for f in pend if not getattr(f, 'opt', False)]
    if pend:
        pend.sort(key=lambda f: f.seq)
        for f in pend:
            out += f.ins; f.gap = n; over += 1
    if verbose:
        print(f"; schedule {verbose}: {n} mfma, {len(fillers)} fillers, {over} overflow ({len(pend)} after end)")
        if verbose.startswith('!'): print(';  ' + ' '.join(pattern))
    return out

NOSCC = ('s_mov_b32', 's_mov_b64', 's_cselect_b32', 's_cselect_b64', 's_mul_i32', 's_getpc_b64', 's_movk_i32')
def dense(lines, gsp=64, verbose=None, wsp=0, dlat=0):
    L = []
    for x in lines:
        if isinstance(x, I): L.append(x)
        else: L += [I(t) for t in x.split('\n') if t.strip()]
    n = len(L); preds = [dict() for _ in range(n)]
    lastw, readers = {}, {}
    for i, ins in enumerate(L):
        R, W = list(ins.reads), list(ins.writes)
        if ins.kind == 'salu':
            if ins.op not in NOSCC: W.append('scc')
            if ins.op.startswith(('s_cselect', 's_addc')): R.append('scc')
        if ins.op.startswith('v_cndmask') and len(ins.ops) < 4: R.append('vcc')
        if ins.kind in ('misc', 'wait', 'hint'): W.append('BAR')
        if ins.kind in ('dsr', 'dsw', 'dma', 'vld', 'vst'): R.append('BAR')
        if ins.kind in ('dma', 'vld', 'vst'): W.append('VM')
        if ins.kind == 'dsw': W.append('LDSW')
        if ins.kind == 'dsr' and 'nodep' not in ins.text: R.append('LDSW')
        for r in R:
            if r in lastw:
                j = lastw[r]; p = L[j]; lat = 0
                if r[0] in 'va' and r != 'vcc':
                    if p.kind == 'mfma': lat = 0 if (ins.kind == 'mfma' and ins.srcc == p.writes) else 44
                    elif p.kind == 'dsr': lat = 110
                    elif p.kind == 'valu': lat = 12 if (ins.kind == 'mfma' or ins.op.startswith('v_permlane') or p.trans) else 0
                elif p.kind == 'valu': lat = 12
                elif r[0] == 'T' and p.kind == 'dma': lat = dlat
                preds[i][j] = max(preds[i].get(j, 0), lat)
        for r in W:
            if r in lastw:
                j = lastw[r]; preds[i][j] = max(preds[i].get(j, 0), gsp if r == 'VM' else wsp if r == 'LDSW' else (44 if L[j].kind == 'mfma' and ins.kind != 'mfma' else 0))
            for j in readers.get(r, []):
                if j != i: preds[i][j] = max(preds[i].get(j, 0), 16 if L[j].kind == 'mfma' and ins.kind == 'valu' else (12 if L[j].kind == 'vst' else 0))
        for r in R: readers.setdefault(r, []).append(i)
        for r in W: lastw[r] = i; readers[r] = []
    done = {}; t = 0; hold = 8; lastM = -100; out = []; left = list(range(n)); prevk = None
    while left:
        cand = [i for i in left if all(j in done for j in preds[i])]
        rt = {i: max([done[j] + l for j, l in preds[i].items()] + [0]) for i in cand}
        ms = [i for i in cand if L[i].kind == 'mfma' and rt[i] <= t]
        ot = [i for i in cand if L[i].kind != 'mfma' and rt[i] <= max(t, lastM + hold)]
        if ms and (t >= lastM + 16 or not ot): i = ms[0]
        elif ot:
            pref = [k for k in ot if L[k].kind in ('dsr', 'dsw', 'dma', 'vld', 'vst', 'salu', 'wait', 'misc')] if prevk == 'mfma' else []
            i = (pref or ot)[0]
        else: i = min(cand, key=lambda k: (rt[k], k))
        ins = L[i]; t = max(t, rt[i])
        if ins.kind == 'mfma': t = max(t, lastM + 16); lastM = t; done[i] = t; t += 4; hold = 12 if ins.op.startswith('v_smfmac') else 8
        else:
            if ins.kind in ('valu', 'dsr', 'dsw', 'dma', 'vld', 'vst'): t = max(t, lastM + hold)
            done[i] = t; t += 8 if (ins.trans or ins.kind in ('dma', 'vld', 'vst')) else (0 if ins.kind == 'hint' else 4)
        prevk = ins.kind; out.append(ins); left.remove(i)
    if verbose: print(f"; dense {verbose}: {n} instr, est {t} cycles")
    return out
```

```python
from k1 import *
S_ = lambda qt, kt: 64 + 16 * qt + 4 * kt
Q_ = lambda qt, ds: 128 + 16 * qt + 4 * ds
P_ = lambda b, qt, ks: 192 + 32 * b + 8 * qt + 4 * ks
C0, C2, N1, N3 = 24, 40, 56, 60
N0, N2 = 16, 24
O_ = lambda qt, dt: 32 * qt + 4 * dt
L_ = lambda qt: 128 + 4 * qt
ONES = 144
KF = lambda kt, ds: 160 + 16 * kt + 4 * ds
VF = lambda dt, ks: 224 + 8 * (dt % 4) + 4 * ks
MASK = lambda kt, r: 32 + 2 * (4 * kt + r)
CIN = {0: lambda kt: C0 + 4 * kt, 1: lambda kt: N1, 2: lambda kt: C2 + 4 * kt, 3: lambda kt: N3}
CINM = lambda kt: C0 + 4 * kt
rdK = lambda kt, ds, off: f"ds_read_b128 {ar(KF(kt, ds))}, v{vKRD} offset:{off + kt * 4096 + ds * 1024}"
rdV = lambda dt, ks, off: f"ds_read_b128 {ar(VF(dt, ks))}, v{vVRD} offset:{off + dt * 2048 + ks * 1024}"

SPS = int(os.environ.get('SPS', '1'))
vIDX = 20
def rowsum(qt, pb, order=(0, 1)):
    if SPS: return [f"v_smfmac_f32_16x16x64_bf16 {ar(L_(qt))}, {ar(ONES)}, {vr(P_(pb, qt, 0), 8)}, v{vIDX}"]
    return [mfma(ar(L_(qt)), ar(ONES), vr(P_(pb, qt, ks)), ar(L_(qt))) for ks in order]
def softmax_quad(fl, qt, kt, pb, lo, hi, pr):
    s = S_(qt, kt)
    es = [F(f"v_exp_f32 v{s+r}, v{s+r}", lo, hi - 5 + r, pr=pr + 2 * r) for r in range(4)]
    fl.extend(es)
    d = P_(pb, qt, kt >> 1) + 2 * (kt & 1)
    for z in range(2):
        fl.append(F(f"v_cvt_pk_bf16_f32 v{d+z}, v{s+2*z}, v{s+2*z+1}", lo, hi, after=es[2*z:2*z+2], pr=pr + 2 * z + 3))

def mask_update(dst, src):
    return [f"v_cndmask_b32 v{dst + 4*kt + r}, v{vNEG}, v{src(kt, r)}, {sr(MASK(kt, r), 2)}" for kt in range(4) for r in range(4)]

import random, est
SEEDS = {'l2e': 149, 'l2o': 5, 'l2m': 149} if SPS else {'l2e': 343, 'l2o': 106, 'l2m': 343}
def body(p, *a, tries=1, **k):
    best = None
    force = os.environ.get('SEED_' + a[4]) or SEEDS.get(a[4])
    for seed in (range(tries) if force is None or os.environ.get('LIST') else [int(force)]):
        code = body1(*a, seed=seed, show=tries == 1, **k)
        c = est.est([i.text for i in code if ';@' not in i.text])[1] + 1000 * (schedule.late if tries > 1 else 0)
        if best is None or c < best[0]: best = (c, seed)
        if os.environ.get('LIST') and tries > 1 and c <= int(os.environ['LIST']): print('; cand', a[4], seed, c)
    if tries > 1: code = body1(*a, seed=best[1], show=True, **k)
    if os.environ.get('V'): print(';', a[4], 'est', best, est.est([i.text for i in code if ';@' not in i.text], True))
    X = os.environ.get('AX', '')
    if a[4][0] == 'l':
        if 'b' in X: code = [i for i in code if i.op != 's_barrier']
        if 'g' in X: code = [i for i in code if i.kind != 'dma']
        if 'v' in X: code = [i for i in code if 'vmcnt' not in i.text]
    if 'd' in X and a[4][:2] == 'l2':
        n_ = [0]
        def keep(i):
            if i.kind != 'dsr': return True
            n_[0] += 1; return n_[0] & 1
        code = [i for i in code if keep(i)]
    if 's' in X:
        n_ = [0]
        def keep(i):
            if i.kind != 'mfma' or 'a[144:147]' not in i.text: return True
            n_[0] += 1; return n_[0] & 1
        code = [i for i in code if keep(i)]
    p.add_sched(code)
    if k.get('nextk', True): p(f"HINT {ar(KF(0, 0))}")
    if k.get('tail'): p(k['tail'][-1])

def body1(par, qk, pv, cin, name, nextk=True, dma=True, extra=None, tail=None, nwide=0, seed=0, show=False, taken=True, prevx=0, last=False):
    rnd = random.Random(seed)
    M, fl = [], []
    nq, npv = len(qk), len(pv)
    endc = {}
    quads = []; vlast = {}
    for kt in range(4):
        for i, qt in enumerate(snake(qk, kt + 1)):
            for z, ds in enumerate(snake(range(4), i)):
                d = vr(S_(qt, kt)); M.append(mfma(d, ar(KF(kt, ds)), vr(Q_(qt, ds)), vr(cin[qt](kt)) if z == 0 else d))
            endc[(qt, kt)] = len(M) - 1; quads.append((qt, kt))
    g_sum = len(M)
    SN3 = os.environ.get('SN3', '1') == '1'
    for qt in pv: M += rowsum(qt, par, snake(range(2), 1 if SN3 and qt == 3 else 0))
    g_pv = len(M)
    for dt in range(8):
        for i, qt in enumerate(snake(pv, dt + 1)):
            for ks in snake(range(2), i): vlast[(dt, ks)] = len(M); M.append(mfma(ar(O_(qt, dt)), ar(VF(dt, ks)), vr(P_(par, qt, ks)), ar(O_(qt, dt))))
    n = len(M)
    e2 = n - 1 if last else n - 2
    LAT = int(os.environ.get('LAT', '6'))
    if nq: softmax_quad(fl, 3, 3, par, 0, min(g_sum + (npv - 4 if SPS else 2 * npv - 5), endc[(3, 3)] - 4), 0)
    assert quads.pop() == (3, 3)
    for k, (qt, kt) in enumerate(quads):
        pr = 8 + (n - 14) * k // max(1, len(quads))
        softmax_quad(fl, qt, kt, par ^ 1, endc[(qt, kt)] + 4, e2, pr)
    koff1 = 16384 if par == 0 else 0
    koff2 = 0 if par == 0 else 16384
    voff = 16384 * par
    k1 = []
    if nq:
        for kt in (2, 3):
            for ds in range(4):
                hi = max(4 * nq * kt + ds - LAT, 4 * (kt - 2) + ds)
                f = F(rdK(kt, ds, koff1), 0, hi, pr=hi - 8); fl.append(f); k1.append(f)
    vrd = []
    for dt in range(8):
        if dt < 4 and not nq: continue
        for ks in range(2):
            g0 = g_pv + 2 * npv * dt + ks
            lo = 0 if dt < 4 else vlast[(dt - 4, ks)]
            hi = max(g0 - LAT, lo)
            f = F(rdV(dt, ks, voff), lo, hi, pr=hi - (10 if dt < 4 else 4)); fl.append(f); vrd.append(f)
    gb = g_pv + 2 * npv * 3 + (int(os.environ.get('GBO', '-12')) if name[:2] == 'l2' else 0)
    if nextk or dma:
        bar = F("s_waitcnt vmcnt(12)\ns_barrier", gb, gb, cls='B'); fl.append(bar)
        if os.environ.get('BS') and name[:2] == 'l2': bar.cls = 'S'; bar.pr = -9
    if nextk:
        aft = [bar]
        if par == 0:
            x = F(f"v_xor_b32 v{vKRD}, 0x8000, v{vKRD}", 0, gb - 1, after=k1); fl.append(x); aft.append(x)
        for kt in (0, 1):
            for ds in range(4):
                hi = min(e2, n + 4 * nq * kt + ds - LAT - 3)
                hi = min(hi, e2 - (7 - 4 * kt - ds))
                fl.append(F(rdK(kt, ds, koff2), gb + 1, hi, after=aft, pr=hi - 4))
    if par == 1 and nextk: fl.append(F(f"v_xor_b32 v{vVRD}, 0x8000, v{vVRD}", 0, n - 2, after=vrd))
    X = dict(n=n, g_sum=g_sum, g_pv=g_pv, endc=endc, gb=gb, pre=[], mid=[], end=[])
    if extra: extra(fl, X)
    if dma:
        ch = DmaChain(fl)
        kd = [([], f"buffer_load_dwordx4 v{vDMA}, {sr(SRD_KVL)}, s{sKOFF} offen offset:{q * 1024} {KVL_FLAGS} lds") for q in range(4)]
        kd[0] = ([f"s_add_u32 m0, s{sKM0}, {16384 * par}", f"s_add_u32 s{sKOFF}, s{sKOFF}, 0x8000"], kd[0][1])
        nx = sum(len(l) for l, _ in X['pre'] + X['mid'])
        bar.ins[0] = I(f"s_waitcnt vmcnt({12 + nx + prevx})")
        body1.nx = nx + sum(len(l) for l, _ in X['end'])
        sp = X.get('sp') or max(4, min(8, (gb - 4) // (4 + nx)))
        for l, aft in X['pre']: ch.add(l, 0, gb - 1 - 4 * sp, after=aft, sp=sp)
        r = ch.add(kd, 0, gb - 1, sp=sp)
        for l, aft in X['mid']: ch.add(l, 0, gb - 1, after=aft, sp=sp)
        bar.after.append(ch.lastg)
        prev = ch.lastg
        for x in X.get('aft', []): prev = F(x, 0, n - 24, after=[prev], cls='S'); fl.append(prev)
        if par == 1: fl.append(F(f"s_xor_b32 s{sKM0}, s{sKM0}, 0x8000", 0, n - 2, after=r[:1]))
        vd = [([], f"buffer_load_dwordx4 v{vDMA}, {sr(SRD_KVL)}, s{sVOFF} offen offset:{q * 1024} {KVL_FLAGS} lds") for q in range(4)]
        vd[0] = ([f"s_add_u32 m0, s{sVM0}, {16384 * (par ^ 1)}", f"s_add_u32 s{sVOFF}, s{sVOFF}, 0x8000"], vd[0][1])
        pre = vd[0][0]
        nx = sum(len(l) for l, _ in X['end'])
        sp = max(3, min(8, (n - 3 - gb) // (4 + nx)))
        r = ch.add(vd, 0, e2 - sp * nx, sp=sp)
        for f in r: f.after.append(bar)
        for l, aft in X['end']: ch.add(l, 0, n - 2, after=aft, sp=sp)
        if par == 0: fl.append(F(f"s_xor_b32 s{sVM0}, s{sVM0}, 0x8000", 0, n - 2, after=r[:1]))
    keep = set()
    nos = set()
    for kt in range(4):
        for ds in range(4): nos.add((4 * nq * kt + ds - 1) % n)
    for dt in range(8):
        for ks in range(2): nos.add(g_pv + 2 * npv * dt + ks - 1)
    nos.discard(gb)
    if tail:
        if taken: keep = {n - 1}
        prev = []
        for k, tx in enumerate(tail[:-1]):
            f = F(tx, n - 22, n - 2, after=prev + [x for x in fl if x.cls == 'S'], cls='S', lag=1); fl.append(f); prev = [f]
    if name[:2] == 'l4':
        for x in os.environ.get('KE4', '').split(','):
            if x: keep.add({'h': 0, 'i': 1, 'a': gb + 1, 'b': gb - 1, 'e': n - 2, 'z': n - 1}[x])
        if os.environ.get('SPR4'):
            for f in fl:
                if f.cls == 'E' and f.pr > 8: f.lo = max(f.lo, int(f.pr * float(os.environ['SPR4'])))
    if seed:
        for f in fl:
            if f.pr >= 0: f.pr += rnd.randint(-JIT, JIT)
        wide = set(rnd.sample([g for g in range(n - 1) if g != gb], nwide))
    else:
        wide = set((2 * k + 1) * n // (2 * nwide) for k in range(nwide)) if nwide else set()
        wide = set(w + 1 if w == gb else w for w in wide)
    return schedule(M, fl, keep_empty=keep, wide=wide, nos=nos, verbose=name if show else None, quiet=not show)
JIT = 6
U4 = int(os.environ.get('U4', '0')) and XH == 15
sHK, vPB = 82, 21
def loop_tail(lbl):
    return [f"s_sub_u32 s{sCNT}, s{sCNT}, 1", f"s_lshr_b32 s{sHK}, s{sHK}, 1", f"s_bitcmp1_b32 s{sHK}, 0", f"s_cselect_b32 s3, 0, s{sCNT}", "s_cmp_gt_u32 s3, 1", f"s_cbranch_scc1 {lbl}"]
def dispatch(p, name, c):
    p(f"""
    L_ev{name}:
    s_bitcmp1_b32 s{sHK}, 0
    s_cbranch_scc1 L_hook{name}
    L_last{name}:
    s_cmp_eq_u32 s{sCNT}, 0
    s_cbranch_scc1 L_after{name}
    """)
    for x in mask_update(c, lambda kt, r: c + 4 * kt + r): p(x)
    p(f"""
    s_branch L_loop{name}
    L_hook{name}:
    s_cmp_lt_u32 s{sHK}, 4
    s_cbranch_scc1 L_hook{name}_b
    s_cmp_gt_u32 s{sCNT}, 1
    buffer_store_dword v{vONE}, v{vATOM}, {sr(SRD_FL)}, s{sLF} offen offset:4 sc1
    s_cbranch_scc1 L_loop{name}
    s_branch L_last{name}
    L_hook{name}_b:
    s_cmp_eq_u32 s{sHK}, 1
    s_cbranch_scc1 L_hook{name}_chk
    s_cmp_gt_u32 s{sCNT}, 1
    {polls.load("late")}
    s_cbranch_scc1 L_loop{name}
    s_branch L_last{name}
    L_hook{name}_chk:
    s_waitcnt vmcnt(8)
    """)
    emit(p, polls.loop("late", f"hook{name}"))
    p(f"""
    L_hook{name}_ok:
    s_cmp_gt_u32 s{sCNT}, 1
    s_cbranch_scc1 L_loop{name}
    s_branch L_last{name}
    L_after{name}:
    """)

K0T = 224
PRE = {}
def gemm_end(fl, bar, vm):
    from prepf import Seq
    lastx = [e[0][1] for e in vm.order if f"{sr(SRD_X)}" in e[0][1].ins[-1].text or f"{sr(SRD_WQ)}" in e[0][1].ins[-1].text][-1]
    sq = Seq(fl)
    o = [f"v_and_b32 v14, 15, v{vLANE}", f"v_lshrrev_b32 v15, 4, v{vLANE}", "v_lshlrev_b32 v15, 2, v15", "v_sub_u32 v14, v14, v15",
         "v_lshrrev_b32 v15, 6, v0", "v_lshl_add_u32 v14, v15, 4, v14", "v_mov_b32 v15, 0"]
    o += [f"v_cmp_le_i32 {sr(MASK(kt, r), 2)}, {16 * kt + r}, v14" for kt in range(4) for r in range(4)]
    m = sq.add(o, 64 * 29 + 44, 64 * 31 - 10, after=[lastx], stag=1.5)
    for kt in range(4):
        for r in range(4):
            pass
    s_ = Seq(fl);
    for x in (f"s_mov_b32 s{sHK}, {0xe if U4 else 0x1a}", f"s_mov_b32 s{sVOFF}, 0x{2 * 32768 + 16384:x}", f"s_add_u32 s{sKM0}, s{sW4K}, 0x{WBASE:x}", f"s_add_u32 s{sVM0}, s{sW4K}, 0x8000",
              f"s_lshl_b32 s{sLF}, s{sH}, 3", f"s_add_u32 s{sLF}, s{sLF}, s{sJ}", f"s_lshl_b32 s{sLF}, s{sLF}, 7", f"s_add_u32 s{sLF}, s{sLF}, {KFLAG}"):
        s_.lag = 1; sc = s_.add([x], 64 * 30, 64 * 31 - 2)
    prev = m
    for r in range(4):
        a = F(f"s_cmp_eq_u32 s{sJ}, 0\ns_cselect_b64 s[0:1], {sr(MASK(0, r), 2)}, -1", 0, 64 * 31 + 10 + 3 * r, cls='S'); a.after2.append((prev, 2))
        prev = F(f"v_cndmask_b32 v{C0 + r}, v{vNEG}, v15, s[0:1]", 0, 64 * 31 + 11 + 3 * r, after=[a]); fl += [a, prev]
    for ds in range(4): fl.append(F(f"ds_read_b128 {ar(K0T + 4*ds)}, v{vKRD} offset:{ds * 1024}", 0, 2040, after=[bar[31]]))
    PRE['mul'] = {}
    for ct in ((0, 1, 4, 5) if QS else range(7)):
        for qt in range(4):
            for e in range(4):
                r = accQ(qt, ct) + e
                f = F(f"v_mul_f32 v{r}, s{sSC}, v{r}", gemm_stream.lastQ[accQ(qt, ct)] + 5, BIG, after=[sc], pr=3000 + 100 * qt + ct); f.opt = True
                fl.append(f); PRE['mul'][r] = f
sLF = 88

def attn_prologue(p, st):
    L = []
    late = list(gemm_stream.late)
    def qk(qt, kt, c, kf):
        for ds in range(4):
            d = vr(S_(qt, kt)); L.append(mfma(d, ar(kf(ds)), vr(Q_(qt, ds)), c if ds == 0 else d))
    def sm(qt, kt):
        s = S_(qt, kt); d = P_(0, qt, kt >> 1) + 2 * (kt & 1)
        for z in range(2): L.extend([f"v_exp_f32 v{s+2*z}, v{s+2*z}", f"v_exp_f32 v{s+2*z+1}, v{s+2*z+1}"])
        for z in range(2): L.append(f"v_cvt_pk_bf16_f32 v{d+z}, v{s+2*z}, v{s+2*z+1}")
    for kt in range(1, 4):
        for ds in range(4): L.append(rdK(kt, ds, 0))
    for pre, x in late: L += pre + [x]
    for qt in range(4):
        for k in range(16):
            s = 128 + 32 * qt + 2 * k
            for r in (s, s + 1):
                if (r not in PRE['mul'] and not QS) or (r in PRE['mul'] and PRE['mul'][r].gap is None): L.append(f"v_mul_f32 v{r}, s{sSC}, v{r}")
            L.append(f"v_cvt_pk_bf16_f32 v{128 + 16 * qt + k}, v{s}, v{s+1}")
        qk(qt, 0, vr(C0) if qt == 0 else '0', lambda ds: K0T + 4 * ds)
    for qt in range(4):
        s = S_(qt, 0); m, t = 14 + qt, 18 + qt
        L += [f"v_max3_f32 v{m}, v{s}, v{s+1}, v{s+2}", f"v_max_f32 v{m}, v{m}, v{s+3}"]
        for op in ("v_permlane32_swap_b32", "v_permlane16_swap_b32"): L += [f"v_mov_b32 v{t}, v{m}", f"{op} v{t}, v{m}", f"v_max_f32 v{m}, v{m}, v{t}"]
        if qt == 0:
            L.append(f"v_sub_f32 v{t}, 0, v{m}")
            L += [f"v_mov_b32 v{C0 + r}, v{t}" for r in range(4)]
            tail_ = [f"v_mov_b32 v{N0 + r}, v{C0}" for r in range(4)]
            for kt in range(1, 4):
                for r in range(4): L += [f"s_cmp_eq_u32 s{sJ}, 0", f"s_cselect_b64 s[{84 + 0}:{85}], {sr(MASK(kt, r), 2)}, -1".replace("s[84:85]", ("s[0:1]", "s[66:67]")[r & 1]), f"v_cndmask_b32 v{C0 + 4*kt + r}, v{vNEG}, v{t}, {('s[0:1]', 's[66:67]')[r & 1]}"]
        else:
            base, cnt = {1: (N1, 4), 2: (C2, 16), 3: (N3, 4)}[qt]
            L += [f"v_sub_f32 v{base + r}, 0, v{m}" for r in range(cnt)]
        for kt in range(1, 4): qk(qt, kt, vr(CIN[qt](kt)), lambda ds: KF(kt, ds))
        if qt == 1:
            L.append("s_waitcnt lgkmcnt(0)\ns_barrier ;! r=K1,V0")
            for pre, x in dma_KV(0, 3) + dma_KV(1, 2): L += pre + [x]
            L.append(f"s_mov_b32 s{sKOFF}, 0x{3 * 32768:x}")
    for ds in range(4): L.append(rdK(0, ds, 16384))
    for qt in range(4):
        L += [f"v_sub_f32 v{S_(qt,0)+r}, v{S_(qt,0)+r}, v{14+qt}" for r in range(4)]
        for kt in range(4):
            if (qt, kt) != (3, 3): sm(qt, kt)
    for ds in range(4): L.append(rdK(1, ds, 16384))
    L += tail_
    if SPS: L += [f"v_and_b32 v{vIDX}, 1, v{vLANE}", f"v_sub_u32 v{vIDX}, 0, v{vIDX}", f"v_and_b32 v{vIDX}, 0xaaaaaaaa, v{vIDX}", f"v_or_b32 v{vIDX}, 0x44444444, v{vIDX}"]
    p.add(dense(L, gsp=int(os.environ.get('PGSP', '160')), verbose="attn_pro"))

def attention(p, st, fz=None):
    p("L_attn:")
    attn_prologue(p, st)
    p(f"HINT {ar(KF(0, 0))}")
    st(p, '1a')
    A4 = [0, 1, 2, 3]
    W4, W2, TR = int(os.environ.get('W4', '0')), int(os.environ.get('W2', '11' if SPS else '7')), int(os.environ.get('TR', '300'))
    p(f"s_mov_b32 s{sCNT}, s{sJ}\ns_cmp_lt_u32 s{sCNT}, 2\ns_cbranch_scc1 L_last4")
    p.label("L_loop4", 6)
    if os.environ.get('STAMP') == 'L': p(f"s_memtime s[0:1]\ns_add_u32 m0, s{sCNT}, 32\ns_waitcnt lgkmcnt(0)\nv_writelane_b32 v23, s0, m0")
    body(p, 0, A4, A4, {**CIN, 0: lambda kt: N0}, "l4e", nwide=W4, extra=fz.ex4e)
    body(p, 1, A4, A4, CIN, "l4o", tail=loop_tail("L_loop4"), nwide=W4, prevx=body1.nx)
    dispatch(p, "4", C0)
    st(p, 'a')
    for x in mask_update(C0, lambda kt, r: N1): p(x)
    cin = dict(CIN); cin[1] = CINM
    if XH == 15:
        body(p, 0, [1, 2, 3], A4, cin, "b43", extra=fz.ex43, tail=[f"s_cmp_lg_u32 s{sJ}, 7", "s_cbranch_scc1 L_nomask2"])
        for x in mask_update(C2, lambda kt, r: C2 + 4 * kt + r): p(x)
        p("L_nomask2:")
    else: body(p, 0, [1, 2, 3], A4, cin, "b43", extra=fz.ex43)
    st(p, 'a')
    def ex32(fl, d):
        fz.ex32(fl, d)
        for r in range(4): fl.append(F(f"v_mov_b32 v{N2 + r}, v{C2}", 0, d['n'] - 1))
    body(p, 1, [2, 3], [1, 2, 3], CIN, "b32", extra=ex32, prevx=body1.nx)
    st(p, 'a')
    ctx_setup(p)
    ctx_store(p, (0, 1))
    st(p, '1a')
    p(f"s_xor_b32 s{sCNT}, s{sJ}, {XH}\ns_sub_u32 s{sCNT}, s{sCNT}, s{sJ}\n{f's_lshr_b32 s{sCNT}, s{sCNT}, 1' if U4 else f's_sub_u32 s{sCNT}, s{sCNT}, 1'}\ns_lshr_b32 s{sHK}, s{sHK}, 1\ns_bitcmp1_b32 s{sHK}, 0\ns_cselect_b32 s3, 0, s{sCNT}\ns_cmp_lt_u32 s3, 2\ns_cbranch_scc1 L_ev2")
    p.label("L_loop2", 6)
    if os.environ.get('STAMP') == 'L': p(f"s_memtime s[0:1]\ns_add_u32 m0, s{sCNT}, 16\ns_waitcnt lgkmcnt(0)\nv_writelane_b32 v23, s0, m0")
    if U4:
        body(p, 0, [2, 3], [2, 3], {**CIN, 2: lambda kt: N2}, "l2e", nwide=W2 - 1, tries=TR, last=True)
        body(p, 1, [2, 3], [2, 3], {**CIN, 2: lambda kt: N2}, "l2m", nwide=W2 - 1, tries=TR, last=True)
    body(p, 0, [2, 3], [2, 3], {**CIN, 2: lambda kt: N2}, "l2e", nwide=W2 - 1, tries=TR, last=True)
    body(p, 1, [2, 3], [2, 3], CIN, "l2o", tail=loop_tail("L_loop2"), nwide=W2 + 1, tries=TR)
    dispatch(p, "2", C2)
    st(p, '1ta')
    attn_tail(p, fz)

DEF3 = int(os.environ.get('DEF3', '0'))
def attn_tail(p, fz):
    L = []
    nd = " ; nodep"
    def sm(kt, pb):
        s = S_(3, kt); d = P_(pb, 3, kt >> 1) + 2 * (kt & 1)
        L.extend([f"v_exp_f32 v{s+r}, v{s+r}" for r in range(4)] + [f"v_cvt_pk_bf16_f32 v{d+z}, v{s+2*z}, v{s+2*z+1}" for z in range(2)])
    mk = mask_update(C0, lambda kt, r: N3)
    for kt in (2, 3):
        for ds in range(4): L.append(rdK(kt, ds, 16384) + nd)
    L += mk[:8]; sm(3, 0); L += mk[8:]
    for dt in range(4):
        for ks in range(2): L.append(rdV(dt, ks, 0) + nd)
    for kt in range(4):
        for ds in range(4):
            d = vr(S_(3, kt)); L.append(mfma(d, ar(KF(kt, ds)), vr(Q_(3, ds)), vr(CINM(kt)) if ds == 0 else d))
    L.append(f"HINT {ar(KF(3, 3))}\ns_waitcnt vmcnt(0)\ns_barrier")
    L += fz.tail_dma()
    for qt in (2, 3): L += rowsum(qt, 0)
    stage = fz.tail_stage()
    for dt in range(8):
        for qt in (2, 3):
            for ks in range(2): L.append(mfma(ar(O_(qt, dt)), ar(VF(dt, ks)), vr(P_(0, qt, ks)), ar(O_(qt, dt))))
        if dt < 4:
            for ks in range(2): L.append(rdV(dt + 4, ks, 0) + nd)
            sm(dt, 1)
    V2 = lambda dt, ks: KF(0, 0) + 8 * dt + 4 * ks
    for dt in range(8):
        for ks in range(2): L.append(f"ds_read_b128 {ar(V2(dt, ks))}, v{vVRD} offset:{16384 + dt * 2048 + ks * 1024}" + nd)
    L += rowsum(3, 1)
    for dt in range(8):
        for ks in range(2): L.append(mfma(ar(O_(3, dt)), ar(V2(dt, ks)), vr(P_(1, 3, ks)), ar(O_(3, dt))))
    q = Prog(); ctx_store(q, (2, 3), (40, 24, 40, 24, 128, 140, 152, 164) if DEF3 else (40, 24)); E = [i for i in q.items]
    if DEF3:
        k0 = [k for k, i in enumerate(E) if i.op == 'v_rcp_f32'][1] + 1
        attn_tail.rest = E[k0:-2]; E = E[:k0] + E[-2:]
    if os.environ.get('STG', 'a') == 'a': L += stage + E
    else: L += E + stage
    L += fz.tail_reads()
    code = dense(L, gsp=int(os.environ.get('TGSP', '70')), wsp=int(os.environ.get('WSP', '52')), dlat=int(os.environ.get('DLAT', '900')), verbose="attn_tail")
    X = os.environ.get('TX', '')
    if 'w' in X: code = [i for i in code if i.kind != 'dsw']
    if 'u' in X: code = [i for i in code if i.kind != 'dma' or 'offset:0 ' in i.text]
    if 's' in X: code = [i for i in code if i.kind != 'vst']
    if 'b' in X: code = [i for i in code if i.kind not in ('misc', 'wait')]
    p.add(code)
    p(f"s_or_b64 vcc, vcc, {sr(sBAD, 2)}\ns_cbranch_scc1 L_slow")

SRD_CTX = 4
sBAD = 70
LMAX = (127 + 60) << 23
def ctx_setup(p):
    p(f"s_lshl_b32 s3, s{sH}, 15\ns_lshl_b32 s31, s{sW}, 10\ns_add_u32 s3, s3, s31")
    srd(p, SRD_CTX, PTR['WS'], 3, WS_CTX, 15 * MB + 32768 - 3072)
def ctx_store(p, qts, T=(192, 224)):
    p(f"s_lshl_b32 s87, s{sJ}, 20")
    if qts[0] >= 2: p(f"s_xor_b32 s87, s87, 0x{XH * MB:x}")
    k = 0
    for i, qt in enumerate(qts):
        rc = 12 if i else (22 if SPS else 20)
        p(f"v_accvgpr_read_b32 v{14+i}, a{L_(qt)}")
        if SPS: p(f"v_accvgpr_read_b32 v{rc}, a{L_(qt)+1}\nv_add_f32 v{14+i}, v{14+i}, v{rc}")
        p(f"v_rcp_f32 v{rc}, v{14+i}")
        for s in range(4):
            t = T[k % len(T)]; k += 1
            for e in range(8): p(f"v_accvgpr_read_b32 v{t+e}, a{O_(qt, 2*s) + e}")
            for e in range(8): p(f"v_mul_f32 v{t+e}, v{t+e}, v{rc}")
            for e in range(4): p(f"v_cvt_pk_bf16_f32 v{t+8+e}, v{t+2*e}, v{t+2*e+1}")
            p(f"s_add_u32 s86, s87, 0x{s * 8192 + (qt & 1) * 4096:x}")
            p(f"buffer_store_dwordx4 {vr(t+8)}, v{vL16}, {sr(SRD_CTX)}, s86 offen sc1 ;! w=CST")
    p(f"v_add_f32 v22, v14, v15\nv_cmp_ngt_f32 vcc, 0x{LMAX:x}, v22")
    if qts[0] < 2: p(f"s_mov_b64 {sr(sBAD, 2)}, vcc")

def slow_path(p, redo):
    sQT, sNT, sT, sPASS, sO = 72, 73, 68, 69, 66
    S, P, CI, V, T = 96, 112, 24, 32, 192
    p(f"""
    L_slow:
    s_waitcnt vmcnt(0) lgkmcnt(0)
    s_mov_b32 s{sQT}, 0
    L_slow_qt:
    s_lshl_b32 s3, s{sJ}, 1
    s_xor_b32 s31, s3, {2 * XH}
    s_cmp_lt_u32 s{sQT}, 2
    s_cselect_b32 s{sNT}, s3, s31
    s_and_b32 s3, s{sQT}, 1
    s_add_u32 s{sNT}, s{sNT}, s3
    s_mov_b32 s{sPASS}, 0
    v_mov_b32 v14, v{vNEG}
    v_mov_b32 v15, 0
    """)
    for r in range(32): p(f"v_accvgpr_write_b32 a{r}, 0")
    for r in range(4): p(f"v_accvgpr_write_b32 a{L_(0)+r}, 0")
    p("L_slow_pass:")
    for r in range(16): p(f"v_mov_b32 v{CI+r}, v15")
    p(f"s_mov_b32 s{sT}, 0\nL_slow_tile:\ns_lshl_b32 s3, s{sT}, 15")
    for kt in range(4):
        for ds in range(4): p(f"buffer_load_dwordx4 {ar(KF(kt, ds))}, v{vL16}, {sr(SRD_KVL)}, s3 offen offset:{ds * 1024} sc1")
        p("s_add_u32 s3, s3, 4096")
    for q in range(16):
        p(f"buffer_load_dwordx4 {ar(V + 4*q)}, v{vL16}, {sr(SRD_KVL)}, s3 offen offset:{(q & 3) * 1024} sc1")
        if q & 3 == 3: p("s_add_u32 s3, s3, 4096")
    p(f"s_cmp_lg_u32 s{sT}, s{sNT}\ns_cbranch_scc1 L_slow_nomask")
    for x in mask_update(CI, lambda kt, r: CI + 4 * kt + r): p(x)
    p("L_slow_nomask:\ns_waitcnt vmcnt(0)")
    for kt in range(4):
        for ds in range(4): p(mfma(vr(S + 4*kt), ar(KF(kt, ds)), vr(128 + 4*ds), vr(CI + 4*kt) if ds == 0 else vr(S + 4*kt)))
    p(f"s_cmp_lg_u32 s{sPASS}, 0\ns_cbranch_scc1 L_slow_p2")
    for r in range(0, 16, 2): p(f"v_max3_f32 v14, v14, v{S+r}, v{S+r+1}")
    p("s_branch L_slow_next\nL_slow_p2:")
    for r in range(16): p(f"v_exp_f32 v{S+r}, v{S+r}")
    for r in range(8): p(f"v_cvt_pk_bf16_f32 v{P+r}, v{S+2*r}, v{S+2*r+1}")
    for ks in range(2): p(mfma(ar(L_(0)), ar(ONES), vr(P + 4*ks), ar(L_(0))))
    for dt in range(8):
        for ks in range(2): p(mfma(ar(4*dt), ar(V + 8*dt + 4*ks), vr(P + 4*ks), ar(4*dt)))
    p(f"""
    L_slow_next:
    s_add_u32 s{sT}, s{sT}, 1
    s_cmp_le_u32 s{sT}, s{sNT}
    s_cbranch_scc1 L_slow_tile
    s_cmp_lg_u32 s{sPASS}, 0
    s_cbranch_scc1 L_slow_store
    v_mov_b32 v16, v14
    v_permlane32_swap_b32 v16, v14
    v_max_f32 v14, v14, v16
    v_mov_b32 v16, v14
    v_permlane16_swap_b32 v16, v14
    v_max_f32 v14, v14, v16
    v_sub_f32 v15, 0, v14
    s_mov_b32 s{sPASS}, 1
    s_branch L_slow_pass
    L_slow_store:
    s_lshl_b32 s3, s{sJ}, 20
    s_xor_b32 s31, s3, 0x{XH * MB:x}
    s_cmp_lt_u32 s{sQT}, 2
    s_cselect_b32 s{sO}, s3, s31
    s_and_b32 s3, s{sQT}, 1
    s_lshl_b32 s3, s3, 12
    s_add_u32 s{sO}, s{sO}, s3
    v_accvgpr_read_b32 v16, a{L_(0)}
    v_rcp_f32 v16, v16
    """)
    for s in range(4):
        for e in range(8): p(f"v_accvgpr_read_b32 v{T+e}, a{8*s + e}")
        for e in range(8): p(f"v_mul_f32 v{T+e}, v{T+e}, v16")
        for e in range(4): p(f"v_cvt_pk_bf16_f32 v{T+8+e}, v{T+2*e}, v{T+2*e+1}")
        p(f"buffer_store_dwordx4 {vr(T+8)}, v{vL16}, {sr(SRD_CTX)}, s{sO} offen sc1\ns_add_u32 s{sO}, s{sO}, 8192")
    for r in range(48): p(f"v_mov_b32 v{128+r}, v{144+r}")
    p(f"""
    s_add_u32 s{sQT}, s{sQT}, 1
    s_cmp_lt_u32 s{sQT}, 4
    s_cbranch_scc1 L_slow_qt
    s_waitcnt vmcnt(0)
    """)
    redo(p)
    p(f"s_mov_b32 s{SRD_CTX+2}, 0\ns_branch L_slow_ret")
```

```python
from common import *
import math, os
sW, sH, sJ = 28, 29, 30
SRD_A, SRD_W0, SRD_W1, SRD_KVS, SRD_FL, SRD_KVL = 4, 8, 12, 16, 20, 24
SRD_DBG = 4
vP8 = 7
SRD_X, SRD_WQ = 56, 60
sCc, sXc, sWc = 32, 40, 48
sW8K, sW4K = 96, 97
vLANE, vDMA, vL16, vKRD, vVRD = 1, 2, 3, 4, 5
vATOM, vONE, vPOLL, vKST, vVST, vNEG = 8, 9, 10, 11, 12, 13
vCpat, vXpat, vWpat, vCrd, vXrd, vWrdKV, vWrdQ = 24, 26, 28, 30, 34, 38, 42
ASLOT = [0, 32768, 131072]
WBASE = 65536

def setup(p):
    if os.environ.get('STAMP'): p("s_memrealtime s[100:101]")
    p(f"""
    s_cmp_ge_u32 s2, 256
    s_cbranch_scc1 L_end
    s_load_dwordx16 s[64:79], s[0:1], 0
    s_load_dwordx16 s[80:95], s[0:1], 64
    """)
    if CT0 == 0: first_touch(p)
    p(f"""
    v_lshrrev_b32 v14, 6, v0
    v_and_b32 v{vLANE}, 63, v0
    v_readfirstlane_b32 s{sW}, v14
    """)
    if MAP:
        p(f"""
        s_and_b32 s3, s2, 6
        s_lshr_b32 s31, s2, 5
        s_lshl_b32 s{sH}, s3, 2
        s_add_u32 s{sH}, s{sH}, s31
        {'s_andn2_b32 s3, 1, s2' if MAP == 2 else 's_and_b32 s3, s2, 0x19'}
        s_bcnt1_i32_b32 s3, s3
        s_and_b32 s3, s3, 1
        s_lshr_b32 s{sJ}, s2, 2
        s_and_b32 s{sJ}, s{sJ}, 6
        s_or_b32 s{sJ}, s{sJ}, s3
        """)
    else:
        p(f"""
        s_and_b32 s3, s2, 7
        s_lshr_b32 s31, s2, 6
        s_lshl_b32 s{sH}, s3, 2
        s_add_u32 s{sH}, s{sH}, s31
        s_lshr_b32 s{sJ}, s2, 3
        s_and_b32 s{sJ}, s{sJ}, 7
        """)
    p(f"""
    s_lshl_b32 s{sW8K}, s{sW}, 13
    s_lshl_b32 s{sW4K}, s{sW}, 12
    """)
CT0 = int(os.environ.get('CT0', '0'))
def first_touch(p):
    for x in code_touch("pg0" if HOP else "code0", "codeend", 20, 127): emit(p, x.replace("s[0:1]", "s[52:53]").replace("s0", "s52").replace("s1", "s53").replace("s3", "s54"))
    p("L_code0:")

def code_touch(a, b, va, vd, n28=False):
    n = len(code_touch.used); code_touch.used.add(n)
    k = f"NL{28 if n28 else 32}_{a}__{b}_"
    return [*([f"s_lshr_b32 s3, s2, 6", "s_mul_i32 s3, s3, 7", f"s_add_u32 s3, s3, s{sJ}"] if n28 else [f"s_lshr_b32 s3, s2, 3"]), f"s_mul_i32 s3, s3, {k}PER",
            f"v_lshrrev_b32 v{va}, 3, v0", f"v_min_u32 v{va}, {k}PM1, v{va}", f"v_add_u32 v{va}, s3, v{va}", f"v_min_u32 v{va}, {k}MAX, v{va}", f"v_lshlrev_b32 v{va}, 7, v{va}",
            f"s_getpc_b64 s[0:1]\ns_nop 0 ;@L_pc{n}\ns_add_u32 s0, s0, L_{a}-L_pc{n}\ns_addc_u32 s1, s1, 0\nv_add_co_u32 v{va}, vcc, s0, v{va}\nv_mov_b32 v{va+1}, s1\nv_addc_co_u32 v{va+1}, vcc, 0, v{va+1}, vcc",
            f"global_load_dword v{vd}, v[{va}:{va+1}], off"]
code_touch.used = set()

def gemm_setup(p, st, w0, a0):
    rk, rq = int(os.environ.get('ROTK', '1')), int(os.environ.get('ROTQ', '1'))
    p(f"""
    v_lshrrev_b32 v16, 4, v{vLANE}
    v_and_b32 v17, 15, v{vLANE}
    v_lshlrev_b32 v18, 1, v16
    v_xor_b32 v18, v17, v18
    v_lshlrev_b32 v18, 4, v18
    v_lshl_add_u32 v{vWpat}, v16, 13, v18
    s_lshr_b32 s99, s2, {5 if MAP else 6}
    s_lshr_b32 s31, s2, 3
    s_add_u32 s99, s99, s31
    s_and_b32 s55, s99, {rk}
    s_lshl_b32 s98, s55, 19
    v_xor_b32 v{vWpat}, s98, v{vWpat}
    v_xor_b32 v{vWpat+1}, 0x80, v{vWpat}
    s_lshl_b32 s3, s{sH}, 8
    s_lshl_b32 s31, s{sW}, 17
    s_add_u32 s3, s3, s31
    """)
    for q in range(4): p(f"s_mov_b32 s{sWc+q}, 0x{q*4*8192 - q*1024:x}")
    q = Prog(); srd(q, SRD_W0, PTR['WUK'], 3, 0, (448+15)*8192 + 256)
    p.add(q.items[2:]); p(w0[0][0][0]); p("s_waitcnt lgkmcnt(0)"); p.add(q.items[:2])
    st(p)
    for _, x in w0: p(x)
    if CT0 == 1: first_touch(p)
    p(f"""
    v_lshrrev_b32 v14, 3, v{vLANE}
    v_and_b32 v15, 7, v{vLANE}
    v_xor_b32 v18, v15, v16
    v_lshlrev_b32 v18, 4, v18
    v_lshl_add_u32 v{vCpat}, v14, 10, v18
    s_lshl_b32 s98, s55, 7
    v_xor_b32 v{vCpat}, s98, v{vCpat}
    v_xor_b32 v{vCpat+1}, 64, v{vCpat}
    s_lshl_b32 s98, s{sJ}, 17
    s_lshr_b32 s31, s{sW}, 1
    s_lshl_b32 s31, s31, 16
    s_add_u32 s98, s98, s31
    s_and_b32 s31, s{sW}, 1
    s_lshl_b32 s31, s31, 20
    s_add_u32 s98, s98, s31
    """)
    srd(p, SRD_A, PTR['CKV'], 98, 0, 64*1024)
    for k, (pre, x) in enumerate(a0):
        for y in pre: p(y)
        p(f"s_mov_b32 s{sCc+k}, 0x{k*8192 - (k&3)*1024:x}\n{x}")
    if CT0 == 2: first_touch(p)
    srd(p, SRD_W1, PTR['WUV'], 3, 0, (448+15)*8192 + 256)
    p(f"""
    v_lshl_add_u32 v{vXpat}, v14, 11, v18
    s_and_b32 s99, s99, {rq & 1 if rq > 7 else rq}
    {f's_xor_b32 s98, s2, s{sJ};s_and_b32 s98, s98, 7;s_lshl_b32 s98, s98, 1;s_or_b32 s99, s99, s98'.replace(';', chr(10)) if rq > 7 else ''}
    s_lshl_b32 s98, s99, 7
    v_xor_b32 v{vXpat}, s98, v{vXpat}
    v_xor_b32 v{vXpat+1}, 64, v{vXpat}
    s_xor_b32 s99, s99, s55
    s_xor_b32 s99, s99, 7
    s_lshl_b32 s99, s99, 19
    v_lshlrev_b32 v{vL16}, 4, v{vLANE}
    v_add_u32 v{vDMA}, s{sW4K}, v{vL16}
    """)

def start_touch(p, st0, what):
    if 'w' in what: p(f"""
    s_and_b32 s98, s{sJ}, 3
    s_lshl_b32 s98, s98, 2
    s_add_u32 s98, s98, s{sW}
    s_lshl_b32 s98, s98, 4
    v_lshrrev_b32 v100, 2, v{vLANE}
    v_add_u32 v100, s98, v100
    v_lshrrev_b32 v101, 1, v100
    v_lshlrev_b32 v101, 13, v101
    v_and_b32 v100, 1, v100
    v_lshl_add_u32 v101, v100, 7, v101
    s_lshl_b32 s98, s{sH}, 8
    s_add_u32 s98, s98, 0x{st0 << 19:x}
    v_add_u32 v101, s98, v101
    s_cmp_ge_u32 s{sJ}, 4
    s_cselect_b64 s[0:1], {sr(PTR['WUV'], 2)}, {sr(PTR['WUK'], 2)}
    global_load_dword v102, v101, s[0:1]
    """)
    if 'c' in what: p(f"""
    s_lshr_b32 s98, s2, 3
    s_lshl_b32 s98, s98, 2
    s_add_u32 s98, s98, s{sW}
    s_lshl_b32 s98, s98, 4
    v_lshrrev_b32 v100, 2, v{vLANE}
    v_add_u32 v100, s98, v100
    v_lshlrev_b32 v101, 10, v100
    v_bfe_u32 v100, v{vLANE}, 1, 1
    v_lshl_add_u32 v101, v100, 7, v101
    v_add_u32 v101, 0x{st0 << 7:x}, v101
    global_load_dword v103, v101, {sr(PTR['CKV'], 2)}
    """)

def gemm_setup2(p):
    p(f"""
    v_lshrrev_b32 v18, 1, v17
    v_xor_b32 v18, v16, v18
    v_lshlrev_b32 v18, 4, v18
    v_lshl_add_u32 v18, v17, 7, v18
    s_and_b32 s31, s{sW}, 1
    s_lshl_b32 s31, s31, 14
    v_add_u32 v{vCrd}, s31, v18
    v_xor_b32 v{vCrd+1}, 64, v{vCrd}
    v_add_u32 v{vCrd+2}, 0x20000, v{vCrd}
    v_add_u32 v{vCrd+3}, 0x20000, v{vCrd+1}
    v_add_u32 v{vXrd}, s{sW8K}, v18
    v_xor_b32 v{vXrd+1}, 64, v{vXrd}
    v_add_u32 v{vXrd+2}, 0x20000, v{vXrd}
    v_add_u32 v{vXrd+3}, 0x20000, v{vXrd+1}
    """)
    p(f"""
    v_bfe_u32 v18, v{vLANE}, 2, 2
    v_and_b32 v19, 1, v16
    v_lshl_add_u32 v19, v19, 2, v18
    v_lshl_add_u32 v18, v16, 3, v18
    v_lshlrev_b32 v18, 8, v18
    v_lshl_add_u32 v18, v19, 5, v18
    v_and_b32 v19, 3, v{vLANE}
    v_lshl_add_u32 v18, v19, 3, v18
    v_add_u32 v{vWrdQ}, 0x{WBASE:x}, v18
    """)
    for ct in range(1, 8): p(f"v_xor_b32 v{vWrdQ+ct}, 0x{ct << 5:x}, v{vWrdQ}")
    p(f"s_lshr_b32 s31, s{sW}, 1\ns_lshl_b32 s31, s31, 7")
    for ct in range(4): p(f"v_xor_b32 v{vWrdKV+ct}, s31, v{vWrdQ+ct}")

def gemm_setup3(p):
    p(f"s_lshl_b32 s3, s{sH}, 8\ns_lshl_b32 s31, s{sW}, 17\ns_add_u32 s3, s3, s31")
    srd(p, SRD_WQ, PTR['WQ'], 3, 0, (960+15)*8192 + 256)
    srd(p, SRD_X, PTR['X'], None, 0, 2048*2048)
    p(f"""
    s_lshl_b32 s3, s{sJ}, 18
    s_lshl_b32 s31, s{sW}, 15
    s_add_u32 s{sXc}, s3, s31
    s_xor_b32 s3, s3, 0x{XH << 18:x}
    s_add_u32 s{sXc+4}, s3, s31
    """)
    for q in (1, 2, 3):
        d = (q >> 1) * 64 * 2048 + (q & 1) * 8 * 2048 - q * 1024
        p(f"s_add_u32 s{sXc+q}, s{sXc}, 0x{d:x}\ns_add_u32 s{sXc+4+q}, s{sXc+4}, 0x{d:x}")
    p(f"s_lshl_b32 s3, s{sH}, 20")
    srd(p, SRD_KVS, PTR['WS'], 3, WS_KV, MB)
    p(f"s_xor_b32 s31, s{sJ}, {XH}\ns_add_u32 s31, s31, 1\ns_lshl_b32 s31, s31, 16")
    srd(p, SRD_KVL, PTR['WS'], 3, WS_KV, "s31")
    srd(p, SRD_FL, PTR['WS'], None, WS_FLAG, 2 * KFLAG)
    p(f"""
    s_lshl_b32 s3, s{sJ}, 16
    s_and_b32 s31, s{sW}, 1
    s_lshl_b32 s31, s31, 15
    s_add_u32 s3, s3, s31
    s_lshr_b32 s31, s{sW}, 1
    s_lshl_b32 s98, s31, 11
    s_add_u32 s98, s98, s3
    v_add_u32 v{vKST}, s98, v{vL16}
    s_lshl_b32 s98, s31, 13
    s_add_u32 s98, s98, s3
    s_add_u32 s98, s98, 0x4000
    v_add_u32 v{vVST}, s98, v{vL16}
    v_lshlrev_b32 v{vATOM}, 20, v0
    s_lshl_b32 s3, s{sH}, 10
    s_add_u32 s3, s3, {KFLAG}
    v_lshlrev_b32 v{vP8}, 7, v15
    v_add_u32 v{vP8}, s3, v{vP8}
    v_mov_b32 v{vONE}, 1
    v_mov_b32 v{vNEG}, 0xff800000
    v_add_u32 v{vKRD}, 0x{WBASE:x}, v{vL16}
    v_mov_b32 v{vVRD}, v{vL16}
    """)

XF = os.environ.get('XF', '')
def dma_A(a):
    out = []
    slot = ASLOT[a % 3]
    s, pat, cst = (SRD_A, vCpat, sCc) if a < 8 else (SRD_X, vXpat, sXc)
    for q in range(8):
        pre = []
        if q == 0 and a not in (0, 8):
            st_ = a if a < 8 else a - 8
            pre += [f"v_xor_b32 v{pat+z}, 0x{(st_ ^ (st_ - 1)) * 128:x}, v{pat+z}" for z in range(2)]
        if q % 4 == 0: pre += [f"s_add_u32 m0, s{sW8K}, 0x{slot + (q >> 2) * 4096:x}"]
        out.append((pre, f"buffer_load_dwordx4 v{pat + (q & 1)}, {sr(s)}, s{cst+q} offen offset:{(q & 3) * 1024} {XF} lds ;! w=A{a}"))
    return out
def dma_W(g):
    out = []
    s = SRD_WQ if g >= 16 else (SRD_W1 if g & 1 else SRD_W0)
    for q in range(4):
        pre = []
        if q == 0:
            if g == 16: pre += [f"v_xor_b32 v{vWpat+z}, s99, v{vWpat+z}" for z in range(2)]
            elif g >= 16 or (g >= 2 and g % 2 == 0):
                st_ = g - 16 if g >= 16 else g // 2
                pre += [f"v_xor_b32 v{vWpat+z}, 0x{(st_ ^ (st_ - 1)) << 19:x}, v{vWpat+z}" for z in range(2)]
            pre += [f"s_add_u32 m0, s{sW4K}, 0x{WBASE + (g % 4) * 16384:x}"]
        out.append((pre, f"buffer_load_dwordx4 v{vWpat + (q >> 1)}, {sr(s)}, s{sWc+q} offen offset:{q * 1024} {XF} lds ;! w=W{g}"))
    return out
sKOFF, sVOFF, sKM0, sVM0, sCNT = 98, 99, 100, 101, 31
import os
STF = os.environ.get('STF', 'sc1').replace('+', ' ')
KVL_FLAGS = os.environ.get('KVF', 'sc1')
def dma_KV(isv, t):
    out = []
    for q in range(4):
        pre = []
        if q == 0:
            pre += [f"s_mov_b32 s{sKOFF}, 0x{t * 32768 + isv * 16384:x}",
                    f"s_add_u32 m0, s{sW4K}, 0x{(0 if isv else WBASE) + (t % 4) * 16384:x}"]
        out.append((pre, f"buffer_load_dwordx4 v{vDMA}, {sr(SRD_KVL)}, s{sKOFF} offen offset:{q * 1024} {KVL_FLAGS} lds"))
    return out
def emit_dma(p, lst):
    for pre, d in lst:
        for x in pre: p(x)
        p(d)

accK = lambda ct, i: 128 + 16 * i + 4 * ct
accV = lambda ct, i: 16 * i + 4 * ct
accQ = lambda qt, ct: 128 + 32 * qt + 4 * ct
cF = lambda i, ks: 128 + 8 * i + 4 * ks
wF = lambda n, ks: 192 + 8 * (n % 4) + 4 * ks
xF = lambda s, qt, ks: (224 if s % 2 == 0 else 160) + 8 * qt + 4 * ks
def rdA(dst, a, idx, ks):
    slot = ASLOT[a % 3]; base = vCrd if a < 8 else vXrd
    v = base + ks + (2 if slot >= 65536 else 0)
    tok = f" ;! w=RA{a}" + (f" r=A{a}" if a >= 8 else "")
    return f"ds_read_b128 {ar(dst)}, v{v} offset:{(slot & 65535) + idx * 2048}{tok}"
def rdW(n, g, ct, ks, hf):
    v = (vWrdKV if g < 16 else vWrdQ) + ct
    return f"ds_read_b64_tr_b16 {ar(wF(n, ks) + 2 * hf, 2)}, v{v} offset:{(g % 4) * 16384 + ks * 8192 + hf * 1024}"

SP = int(os.environ.get('SP', '4'))
class DmaChain:
    def __init__(self, fl): self.fl = fl; self.last = None; self.lastg = None
    def add(self, lst, lo, hi, after=(), sp=None):
        n = len(lst); res = []; sp = sp or SP
        for k, (pre, d) in enumerate(lst):
            h = hi - sp * (n - 1 - k)
            for x in pre:
                f = F(x, lo, h - 1, after=([self.last] if self.last else []) + list(after), lag=1, cls='V' if x.startswith('v_') else 'S', pr=-1); self.fl.append(f); self.last = f
            f = F(d, lo, h, after=([self.last] if self.last else []) + list(after), lag=1); self.fl.append(f); self.last = f; res.append(f)
            f.pr = -1
            if self.lastg: f.after2.append((self.lastg, sp))
            self.lastg = f
        return res

QS = int(os.environ.get('QS', '1'))
sSC = 83
HOP = int(os.environ.get('HOP', '2'))
HS = [[int(y) for y in x.split(':')] for x in os.environ.get('HS', '0:8,167:15,10188:20').split(',')]
def hop_session(k):
    t = "s_mov_b64 exec, 0\n" if HOP == 2 else ""
    for w in range(3): t += f"s_cmp_eq_u32 s{sW}, {w}\ns_cbranch_scc1 L_hr{k} ;hop{k}_{w}\n"
    t += f"s_branch L_hr{k} ;hop{k}_3\ns_nop 0 ;@L_hr{k}"
    return t + ("\ns_mov_b64 exec, -1" if HOP == 2 else "")
class Polls:
    def __init__(self): self.t = {}; self.ool = []
    def load(self, name):
        srd_, voff, soff, off, _, _, v = self.t[name]
        return f"buffer_load_dword v{v}, {voff}, {sr(srd_)}, {soff} {'offen ' if voff != 'off' else ''}offset:{off} sc1"
    def loop(self, name, tag=None):
        _, _, _, _, val, op, v = self.t[name]; tag = tag or name
        return f"""s_mov_b32 s0, 0
        s_nop 0 ;@L_{tag}_loop
        v_cmp_{op}_u32 vcc, {val}, v{v}
        s_cbranch_vccz L_{tag}_ok
        {f"s_sleep {os.environ['SLP']}" if os.environ.get('SLP') else ''}
        {self.load(name)}
        s_add_u32 s0, s0, 1
        s_cmp_lt_u32 s0, 0x200000
        s_waitcnt vmcnt(0)
        s_cbranch_scc1 L_{tag}_loop"""
    def inline(self, name): return f"HINT v{self.t[name][6]}\n" + self.loop(name) + f"\ns_nop 0 ;@L_{name}_ok"
    def check(self, name, tag=''):
        _, _, _, _, val, op, v = self.t[name]; t = name + tag
        self.ool.append(f"s_nop 0 ;@L_{t}_wait\n" + self.loop(name, t) + f"\ns_branch L_{t}_ok")
        return f"v_cmp_{op}_u32 vcc, {val}, v{v}\ns_cbranch_vccnz L_{t}_wait\ns_nop 0 ;@L_{t}_ok"
polls = Polls()
polls.t.update(clr=(SRD_DBG, "off", f"s{sKM0}", 0, 0, 'eq', vPOLL), kv=(SRD_FL, f"v{vP8}", "0", 0, 1, 'ne', vPOLL), late=(SRD_FL, f"v{vP8}", "0", 4, 1, 'ne', 21))
def emit(p, txt): p.add_sched([I(x) for x in txt.split('\n') if x.strip()])

def touch_fill(fl, vm, g, a, b, va, vd, st):
    ct = [x.replace('s3', f's{st}') for x in code_touch(a, b, va, vd)]
    prev = None
    for x in ct[:-2]:
        f = F(x, g - 30, g - 8, after=[prev] if prev else [], pr=-1); fl.append(f); prev = f
    prev = F(ct[-2], g - 30, g - 2, after=[prev], cls='B', pr=-1); fl.append(prev)
    vm.add([([], ct[-1])], g, g + 40, 2, after=[prev], margin=10)
def label_fill(fl, g, name): fl.append(F(f"s_nop 0 ;@L_{name}", g, g, cls='S'))

class VM:
    def __init__(self, fl): self.fl = fl; self.groups = []
    def add(self, lst, lo, key, cost, after=(), margin=40, stream=None, prio=1):
        ops = []
        for pre, d in lst:
            ops.append(([F(x, cls='V' if x.startswith('v_') else 'S', after=list(after), pr=-1) for x in pre], F(d, after=list(after), pr=-1)))
        self.groups.append(dict(ops=ops, lo=lo, key=key, cost=cost, margin=margin, stream=stream, n=len(self.groups), prio=prio))
        return [o[1] for o in ops]
    def emit(self, t0=0, minsp=3, show=False):
        G = list(self.groups); order = []; t = t0
        while G:
            head = [g for g in G if g['stream'] is None or not any(h['stream'] == g['stream'] and h['n'] < g['n'] for h in G)]
            av = [g for g in head if g['lo'] <= t] or [min(head, key=lambda g: g['lo'])]
            due = [g for g in av if g['key'] - g['margin'] - minsp * len(g['ops']) <= t]
            g = min(due, key=lambda g: (g['key'], g['n'])) if due and any(g['prio'] != 1 for g in av) else min(av, key=lambda g: (g['prio'], g['key'], g['n'])); G.remove(g)
            t = max(t, g['lo'])
            t = max(g['lo'], min(t, g['key'] - g['margin'] - minsp * len(g['ops'])))
            for o in g['ops']: order.append([o, t, g]); t += g['cost']
        latest = BIG
        for e in reversed(order):
            latest = min(latest - minsp, e[2]['key'] - e[2]['margin']); e.append(latest)
        last = lastg = None
        for (pre, f), t, g, lat in order:
            tt = max(g['lo'], min(int(t), lat))
            for x in pre:
                x.lo = max(g['lo'], tt - len(pre) - 2); x.hi = tt + 10
                if last: x.after.append(last)
                self.fl.append(x); last = x
            f.lo = tt; f.hi = tt + 12; f.must = g['key']
            if last: f.after.append(last)
            if lastg: f.after2.append((lastg, minsp))
            self.fl.append(f); last = lastg = f
        self.order = order
    def check(self, show=False):
        if show: print('; vm:', ' '.join(f"{e[0][1].gap}" for e in self.order))
        bad = [(e[0][1].gap, e[2]['key'], e[0][1].ins[-1].text) for e in self.order if e[0][1].gap >= e[2]['key']]
        assert not bad, bad[:3]
        print('; vm min lead', min((e[2]['key'] - e[0][1].gap, e[0][1].gap, e[0][1].ins[-1].text[:60]) for e in self.order))

def gemm_stream(p, st, hook=None, endhook=None):
    M, fl = [], []
    wt = []
    FW = int(os.environ.get('FW', '0'))
    cuse = {}; lastK = {}; firstQ = {}; gemm_stream.lastQ = {}
    for u in range(16):
        s, isv = u >> 1, u & 1
        def kvpass(n, ct, rows):
            for pos, i in enumerate(rows):
                for z, ks in enumerate(snake(range(2), pos)):
                    first = s == 0 and z == 0
                    cuse.setdefault((s, i, ks), []).append(len(M))
                    if not isv: d = vr(accK(ct, i)); lastK[accK(ct, i)] = len(M); M.append(mfma(d, ar(wF(n, ks)), ar(cF(i, ks)), '0' if first else d))
                    else: d = ar(accV(ct, i)); M.append(mfma(d, ar(cF(i, ks)), ar(wF(n, ks)), '0' if first else d))
        if u == 0 and FW:
            for ct in range(4): wt.append((0, ct, 8 * ct, 32 + 8 * ct + 7))
            for rows in ((0, 1, 4, 5), (2, 3, 6, 7)):
                for ct in range(4): kvpass(ct, ct, snake(rows, ct))
            continue
        for ct in range(4):
            n = len(wt); wt.append((u, ct, len(M), len(M) + 15))
            kvpass(n, ct, snake(range(8), ct + s if os.environ.get('SN4', '1') == '1' else (ct if not isv else (0, 1, 1, 0)[ct])))
    for s in range(16):
        for ct in range(8):
            n = len(wt); wt.append((16 + s, ct, len(M), len(M) + 7))
            for pos, qt in enumerate(snake(range(4), ct)):
                for z, ks in enumerate(snake(range(2), pos)):
                    firstQ.setdefault(accQ(qt, ct), len(M)); gemm_stream.lastQ[accQ(qt, ct)] = len(M)
                    d = vr(accQ(qt, ct)); M.append(mfma(d, ar(wF(n, ks)), ar(xF(s, qt, ks)), '0' if s == 0 and z == 0 else d))
    bar = {}
    BP = 40
    SIG_U = int(os.environ.get('SIG', '25'))
    NPRE_W = int(os.environ.get('NPREW', '3')); KOFF = int(os.environ.get('KOFF', '30'))
    for u in range(32):
        need = [f"W{u+1}"] if u < 31 else ["K0"]
        if u < 15 and u & 1: need.append(f"A{(u + 1) >> 1}")
        if u < 16 and not u & 1: need.append(f"RA{u >> 1}")
        if u >= 29: need.append(f"RA{u - 8}")
        if u == SIG_U: need += ["ST"] + (["PREP"] if hook else [])
        bar[u] = F(f"s_barrier", 64 * u + BP, 64 * u + BP, cls='B'); fl.append(bar[u])
    for n in range(2, len(wt)):
        g, ct, g0, g1 = wt[n]
        lo = wt[n - 4][3] + 1 if n >= 4 else 0
        aft = [bar[g - 1]] if g >= 1 else []
        lo = max(lo, g0 - 26)
        for k, (ks, hf) in enumerate([(0, 0), (0, 1), (1, 0), (1, 1)]):
            fl.append(F(rdW(n, g, ct, ks, hf), lo, g0 - 10 + k, after=aft))
    if FW:
        g0 = int(os.environ.get('FWB', '20'))
        b0 = F("s_barrier ;! r=A0", g0, g0, cls='B'); fl.append(b0)
        for k, i in enumerate((2, 3, 6, 7)):
            for ks in range(2): fl.append(F(rdA(cF(i, ks), 0, i, ks), g0 + 1, g0 + 2 + 2 * k + ks, after=[b0], pr=-2))
    for s in range(1, 8):
        for i in range(8):
            for ks in range(2):
                fl.append(F(rdA(cF(i, ks), s, i, ks), cuse[(s - 1, i, ks)][-1], cuse[(s, i, ks)][0] - 8, after=[bar[2 * s - 1]]))
    xr = {}
    for s in range(16):
        base = 64 * (15 + s)
        xr[s] = []
        for qt in range(4):
            for ks in range(2):
                k = 2 * qt + ks
                f = F(rdA(xF(s, qt, ks), 8 + s, qt, ks), base + 2 + 4 * k, base + 24 + 4 * k); fl.append(f); xr[s].append(f)
    kcv = {}
    ksc = F(f"s_mov_b32 s{sSC}, {f32hex(QSCALE)}", 64 * 12, 64 * 13); fl.append(ksc)
    for i in range(8):
        for a in range(2):
            f_ = 2 * i + a; kcv[f_] = []
            for h in range(2):
                src = accK(2 * a + h, i)
                for z in range(2):
                    lastw = lastK[src]; ml = []
                    if QS and a == 1:
                        ml = [F(f"v_mul_f32 v{r}, s{sSC}, v{r}", lastw + 6, firstQ[src] - 3, after=[ksc]) for r in (src + 2 * z, src + 2 * z + 1)]; fl += ml
                    f = F(f"v_cvt_pk_bf16_f32 v{64 + 4 * f_ + 2 * h + z}, v{src + 2 * z}, v{src + 2 * z + 1}", lastw + 6, firstQ[src] - 1, after=ml)
                    fl.append(f); kcv[f_].append(f)
                    for x in ml + [f]: x.slack = int(os.environ.get('KSL', '40'))
    vm = VM(fl)
    E = lambda k, d: float(os.environ.get(k, d))
    CH, CM, CS = E('CH', '7'), E('CM', '4.7'), E('CS', '6')
    bg = lambda u: 64 * u + BP
    S0, S1 = 64 * 15 + 24, bg(SIG_U) - 50
    skey = lambda z: int(S0 + 60 + (S1 - S0 - 20) * (z + 1) / 16)
    SAL = int(E('SAL', '0'))
    if SAL:
        SN_, SOFF = int(E('SALN', '2')), int(E('SOFF', '30'))
        skey = lambda z: 64 * (SAL + z // SN_) + SOFF + 4 * (z % SN_) + 60
        KOFF = -20
    def kop(f_, tok):
        i, a = f_ >> 1, f_ & 1
        return ([f"s_mov_b32 s3, 0x{(i >> 2) * 0x80000 + (i & 3) * 4096:x}"], f"buffer_store_dwordx4 {vr(64 + 4 * f_)}, v{vKST}, {sr(SRD_KVS)}, s3 offen offset:{a * 1024} {STF} ;! w={tok}")
    def vop(f_, tok):
        ct, b = (f_ >> 1) & 3, (f_ >> 3) * 2 + (f_ & 1)
        return ([f"s_mov_b32 s3, 0x{(b >> 1) * 0x80000 + (ct >> 1) * 4096:x}"], f"buffer_store_dwordx4 {vr(64 + 4 * (f_ & 7))}, v{vVST}, {sr(SRD_KVS)}, s3 offen offset:{(ct & 1) * 2048 + (b & 1) * 1024} {STF} ;! w={tok}")
    free = {}
    for f_ in range(8): free[f_] = vm.add([kop(f_, 'ST')], skey(f_) - 60, skey(f_) + KOFF, CS, after=kcv[f_], stream='st', margin=36 if SAL else KOFF + 20)[0]
    tmp_last = {}; zero_after = {}; vcv = {}
    kk = 0; hi_prev = 0
    for f_ in (0, 1, 2, 3, 8, 4, 9, 5, 10, 6, 11, 7, 12, 13, 14, 15):
        ct, b = (f_ >> 1) & 3, (f_ >> 3) * 2 + (f_ & 1)
        cv = []
        if f_ < 8: hi = skey(8 + f_) - 64; lo = max(1030, hi - int(E('VLO', '200')))
        else: lo = 1030; hi = skey(f_ + 4) - 80 if f_ < 12 else skey(15) + 30 * (f_ - 11)
        if SAL: hi = max(hi, hi_prev + 10)
        hi_prev = hi
        for h in range(2):
            for z in range(2):
                k = 4 * f_ + 2 * h + z; t = 50 + 2 * (kk % 7); kk += 1; src = accV(ct, 2 * b + h) + 2 * z
                aft = [tmp_last[t]] if t in tmp_last else []
                r0 = F(f"v_accvgpr_read_b32 v{t}, a{src}", lo, hi - 4, after=aft); r1 = F(f"v_accvgpr_read_b32 v{t+1}, a{src+1}", lo, hi - 4, after=aft)
                c = F(f"v_cvt_pk_bf16_f32 v{64 + (k & 31)}, v{t}, v{t+1}", lo, hi - 2, after=[r0, r1, free[f_ & 7]]); tmp_last[t] = c
                fl.extend([r0, r1, c]); cv.append(c); zero_after[src] = r0; zero_after[src + 1] = r1
        vcv[f_] = cv
        if f_ < 8: free[f_] = vm.add([vop(f_, 'ST')], skey(8 + f_) - 60, skey(8 + f_) + KOFF, CS, after=cv, stream='st', margin=36 if SAL else KOFF + 20)[0]
    late = []
    for m in range(4): late += [(vop(8 + m, 'SL'), vcv[8 + m]), (vop(12 + m, 'SL'), vcv[12 + m]), (kop(8 + m, 'SL'), []), (kop(12 + m, 'SL'), [])]
    NL, L0, CL = int(E('NL', '8')), int(E('L0', '1850')), E('CL', '16')
    for z in range(NL): vm.add([late[z][0]], int(L0 + z * (2040 - L0) / NL), 2090 + z, 3, after=late[z][1], stream='sl', margin=45)
    gemm_stream.late = [x[0] for x in late[NL:]]
    WP0, WP1 = [int(x) for x in os.environ.get('WPR', '99,99').split(',')]
    for g in range(NPRE_W, 32):
        vm.add(dma_W(g), bg(g - 3) + 1 if g >= 4 else 0, bg(g - 1), CH if g < int(E('NCW', '16')) else CM, after=[bar[g - 3]] if g >= 4 else [], stream='W', prio=0 if WP0 <= g <= WP1 else 1)
    for a in range(1, 24):
        lst = dma_A(a)
        if a < 3: lo, aft = 0, []
        elif a < 11: lo, aft = bg(2 * (a - 3)) + 1, [bar[2 * (a - 3)]]
        else:
            lo, aft = 64 * (a + 4) + 62, xr[a - 11]
            lst[0] = (lst[0][0], lst[0][1] + f" r=RA{a - 3}")
        key = bg(2 * a - 1) if a < 8 else 64 * (7 + a) + 2
        for h in range(2): vm.add(lst[4*h:4*h+4], lo, key, CH if a < int(E('NCA', '8')) else CM, after=aft, stream='A')
    lastA = [g for g in vm.groups if 'w=A7' in g['ops'][-1][1].ins[-1].text][-1]['ops'][-1][1]
    vm.add([([f"s_mov_b32 s{SRD_DBG}, s{PTR['DBG']}", f"s_mov_b32 s{SRD_DBG+1}, s{PTR['DBG']+1}", f"s_mov_b32 s{SRD_DBG+2}, 256", f"s_lshl_b32 s{sKM0}, s{sH}, 2"], polls.load("clr"))], 64 * 13, 64 * 15, 1, after=[lastA], margin=60)
    clr = F(polls.check("clr"), 64 * 15 + 1, 64 * 15 + 1, cls='B'); fl.append(clr)
    vm.add([([f"s_lshl_b32 s3, s{sH}, 3", f"s_add_u32 s3, s3, s{sJ}", "s_lshl_b32 s3, s3, 7", f"s_add_u32 s3, s3, {KFLAG}"], f"buffer_store_dword v{vONE}, v{vATOM}, {sr(SRD_FL)}, s3 offen sc1")], bg(SIG_U) + 1, bg(SIG_U) + 30, 1, after=[bar[SIG_U], clr], margin=20)
    vm.add([([], polls.load("kv"))], bg(29) - 70, bg(29) - 2, 1, margin=50)
    kvc = F(polls.check("kv"), bg(29) - 2, bg(29) - 2, cls='B'); fl.append(kvc)
    vm.add([([f"s_add_u32 s3, s{sKM0}, 128", f"s_cmp_eq_u32 s{sJ}, 7\ns_cselect_b32 s3, s3, 0x1000"], f"buffer_store_dword v{vONE}, v{vATOM}, {sr(SRD_DBG)}, s3 offen sc1")], bg(29) + 1, 64 * 30 - 1, 1, after=[kvc], margin=4)
    vm.add(dma_KV(0, 0), bg(29) + 1, bg(31), CM, after=[bar[29]], stream='KV')
    vm.add(dma_KV(1, 0), bg(29) + 1, 2060, CM, after=[bar[29]], stream='KV')
    vm.add(dma_KV(0, 1), bg(30) + 1, 2061, CM, after=[bar[30]], stream='KV')
    vm.add(dma_KV(0, 2) + dma_KV(1, 1), bg(31) + 1, 2100, 3, after=[bar[31]], stream='KV')
    vm.kcv = kcv; vm.bar = bar
    q = Prog(); gemm_setup3(q); hook(-1, q, None, None)
    prev = None; k = 0
    its = q.items
    while k < len(its):
        t = its[k].text
        if k + 1 < len(its) and its[k + 1].op == 's_addc_u32': t += "\n" + its[k + 1].text; k += 1
        f = F(t, 0, int(E('SU3', '73')), pr=-1, cls='V' if t.startswith('v_') else 'S')
        if prev: f.after2.append((prev, 0))
        fl.append(f); prev = f; k += 1
    vm.setup = prev
    if hook: hook(0, vm, fl, CH)
    for k, (g, a, b) in enumerate(((int(E('CTA', '0')), 'gq0', 'gq1'), (int(E('CTB', '0')), 'gq1', 'attn'))):
        if g: touch_fill(fl, vm, g, a, b, 18 if k == 0 else 20, 17, 31)
    if E('CT2', '0'): touch_fill(fl, vm, int(E('CT2', '0')), 'attn', 'after2', 20, 17, 31)
    if HOP:
        for k in range(1, len(HS)):
            if HS[k][0] < 10000: fl.append(F(hop_session(k), HS[k][0], HS[k][0], cls='B'))
    label_fill(fl, 64 * 14, 'gq0'); label_fill(fl, 64 * 23, 'gq1')
    vm.emit(t0=int(E('T0', '20')))
    zr = F(f"v_mov_b32 v19, 0x30000", 64 * 17, 64 * 18); fl.append(zr)
    for r in range(0, 144, 4):
        fl.append(F(f"ds_read_b128 {ar(r)}, v19", 64 * 18, 64 * 31 - 20, after=[zr] + [zero_after[x] for x in range(r, r + 4) if x < 128], pr=5000))
    if E('ON4', '1'):
        prev = []
        for k, x in enumerate((f"v_and_b32 v14, {2 if E('SPS', '1') else 3}, v{vLANE}", "v_min_u32 v14, 1, v14", "v_subrev_u32 v14, 1, v14", "v_and_b32 v14, 0x3f803f80, v14")):
            prev = [F(x, 64 * 19, 64 * 21 - 8 + k, after=prev)]; fl += prev
    else: fl.append(F(f"v_mov_b32 v14, 0x3f803f80", 64 * 20, 64 * 21 - 2))
    for r in range(144, 148): fl.append(F(f"v_accvgpr_write_b32 a{r}, v14", 64 * 21, 64 * 29))
    if endhook: endhook(fl, bar, vm)
    a0 = dma_A(0)
    if FW: a0 = [(pre, x.replace("w=A0", "w=A0a") if k < 4 else x) for k, (pre, x) in enumerate(a0)]
    gemm_setup(p, st, dma_W(0), a0)
    gemm_setup2(p)
    STT, WPRE = os.environ.get('STT', ''), int(E('WPRE', '0'))
    if STT[:1] == 'a': start_touch(p, int(E('STS', '2')), STT[1:])
    if WPRE:
        for g in range(1, NPRE_W): emit_dma(p, dma_W(g))
        if STT[:1] == 'b': start_touch(p, int(E('STS', '2')), STT[1:])
    if HOP:
        p.note('''While the first tiles are on their way every wave visits the first instruction line of a few code pages (branches only, no memory
        instruction on that path): sequential instruction prefetch stops at page ends.''')
        emit(p, hop_session(0).rsplit('\n', 2 if HOP == 2 else 1)[0])
        p.label("L_pg0", 12)
        p("L_hr0:")
        if HOP == 2: p("s_mov_b64 exec, -1")
    if not WPRE:
        for g in range(1, NPRE_W): emit_dma(p, dma_W(g))
        if STT[:1] == 'b': start_touch(p, int(E('STS', '2')), STT[1:])
    p("s_barrier ;! r=A0a,W0" if FW else "s_barrier ;! r=A0,W0")
    st(p)
    for u in [int(x) for x in os.environ.get('GU', '4,8,12,16,20,24,28').split(',')]: st.fill(fl, 64 * u - 1, '1g' if u == 16 else 'g')
    for ks in range(2):
        for hf in range(2): p(rdW(0, 0, 0, ks, hf))
    NF = 8 if FW else int(E('NF', '4'))
    for i in ((0, 1, 4, 5) if FW else range(8)):
        for ks in snake(range(2), i):
            if i < NF: p(rdA(cF(i, ks), 0, i, ks))
            else: fl.append(F(rdA(cF(i, ks), 0, i, ks), 0, cuse[(0, i, ks)][0] - 2 * NF, pr=-8))
    for k, (ks, hf) in enumerate(((0, 0), (0, 1), (1, 0), (1, 1))):
        if NF == 8: p(rdW(1, 0, 1, ks, hf))
        else: fl.append(F(rdW(1, 0, 1, ks, hf), 0, 16 - 2 * NF + k, pr=-7))
    code = schedule(M, fl, verbose="gemm", rate=E('RATE', '19') or None)
    vm.check(os.environ.get('V'))
    for ins in code:
        if os.environ.get('NOST') and 'w=ST' in ins.text: ins = I("s_nop 0 ;! w=ST")
        AB_ = os.environ.get('ABL', '')
        if 'w' in AB_ and (ins.kind == 'dsw'): ins = I("s_nop 0")
        if 'p' in AB_ and ins.op == 'ds_bpermute_b32': ins = I("s_nop 0")
        if 'v' in AB_ and ins.kind == 'valu' and ins.op.startswith(('v_fmac', 'v_and', 'v_lshlrev')) and any(104 <= int(r[1:]) < 123 for r in ins.writes): continue
        if 'u' in AB_ and ins.op == 'buffer_load_dwordx2': ins = I("s_nop 0")
        if 'g' in AB_ and ins.kind == 'vld' and 's77 offen' in ins.text: ins = I("s_nop 0")
        if 't' in AB_ and ins.op == 'global_load_dword': ins = I("s_nop 0")
        if 's' in AB_ and ins.op == 'buffer_store_dwordx4' and 'PREP' in ins.text: ins = I("s_nop 0")
        if os.environ.get('NODMA') and ins.kind == 'dma': ins = I("s_nop 0 ;!" + ins.text.split(';!')[1])
        if os.environ.get('NOBAR') and ins.op == 's_barrier': ins = I("s_nop 0 ;!" + ins.text.split(';!')[1])
        p.add_sched([ins])

QSCALE = math.log2(math.e) / math.sqrt(128.0)
import struct
def f32hex(x): return "0x%08x" % struct.unpack("<I", struct.pack("<f", x))[0]
```

```python
from k1 import *
S_ = lambda qt, kt: 64 + 16 * qt + 4 * kt
Q_ = lambda qt, ds: 128 + 16 * qt + 4 * ds
P_ = lambda b, qt, ks: 192 + 32 * b + 8 * qt + 4 * ks
C0, C2, N1, N3 = 24, 40, 56, 60
N0, N2 = 16, 24
O_ = lambda qt, dt: 32 * qt + 4 * dt
L_ = lambda qt: 128 + 4 * qt
ONES = 144
KF = lambda kt, ds: 160 + 16 * kt + 4 * ds
VF = lambda dt, ks: 224 + 8 * (dt % 4) + 4 * ks
MASK = lambda kt, r: 32 + 2 * (4 * kt + r)
CIN = {0: lambda kt: C0 + 4 * kt, 1: lambda kt: N1, 2: lambda kt: C2 + 4 * kt, 3: lambda kt: N3}
CINM = lambda kt: C0 + 4 * kt
rdK = lambda kt, ds, off: f"ds_read_b128 {ar(KF(kt, ds))}, v{vKRD} offset:{off + kt * 4096 + ds * 1024}"
rdV = lambda dt, ks, off: f"ds_read_b128 {ar(VF(dt, ks))}, v{vVRD} offset:{off + dt * 2048 + ks * 1024}"

SPS = int(os.environ.get('SPS', '1'))
vIDX = 20
def rowsum(qt, pb, order=(0, 1)):
    if SPS: return [f"v_smfmac_f32_16x16x64_bf16 {ar(L_(qt))}, {ar(ONES)}, {vr(P_(pb, qt, 0), 8)}, v{vIDX}"]
    return [mfma(ar(L_(qt)), ar(ONES), vr(P_(pb, qt, ks)), ar(L_(qt))) for ks in order]
def softmax_quad(fl, qt, kt, pb, lo, hi, pr):
    s = S_(qt, kt)
    es = [F(f"v_exp_f32 v{s+r}, v{s+r}", lo, hi - 5 + r, pr=pr + 2 * r) for r in range(4)]
    fl.extend(es)
    d = P_(pb, qt, kt >> 1) + 2 * (kt & 1)
    for z in range(2):
        fl.append(F(f"v_cvt_pk_bf16_f32 v{d+z}, v{s+2*z}, v{s+2*z+1}", lo, hi, after=es[2*z:2*z+2], pr=pr + 2 * z + 3))

def mask_update(dst, src):
    return [f"v_cndmask_b32 v{dst + 4*kt + r}, v{vNEG}, v{src(kt, r)}, {sr(MASK(kt, r), 2)}" for kt in range(4) for r in range(4)]

import random, est
SEEDS = {'l2e': 149, 'l2o': 5, 'l2m': 149} if SPS else {'l2e': 343, 'l2o': 106, 'l2m': 343}
def body(p, *a, tries=1, **k):
    best = None
    force = os.environ.get('SEED_' + a[4]) or SEEDS.get(a[4])
    for seed in (range(tries) if force is None or os.environ.get('LIST') else [int(force)]):
        code = body1(*a, seed=seed, show=tries == 1, **k)
        c = est.est([i.text for i in code if ';@' not in i.text])[1] + 1000 * (schedule.late if tries > 1 else 0)
        if best is None or c < best[0]: best = (c, seed)
        if os.environ.get('LIST') and tries > 1 and c <= int(os.environ['LIST']): print('; cand', a[4], seed, c)
    if tries > 1: code = body1(*a, seed=best[1], show=True, **k)
    if os.environ.get('V'): print(';', a[4], 'est', best, est.est([i.text for i in code if ';@' not in i.text], True))
    X = os.environ.get('AX', '')
    if a[4][0] == 'l':
        if 'b' in X: code = [i for i in code if i.op != 's_barrier']
        if 'g' in X: code = [i for i in code if i.kind != 'dma']
        if 'v' in X: code = [i for i in code if 'vmcnt' not in i.text]
    if 'd' in X and a[4][:2] == 'l2':
        n_ = [0]
        def keep(i):
            if i.kind != 'dsr': return True
            n_[0] += 1; return n_[0] & 1
        code = [i for i in code if keep(i)]
    if 's' in X:
        n_ = [0]
        def keep(i):
            if i.kind != 'mfma' or 'a[144:147]' not in i.text: return True
            n_[0] += 1; return n_[0] & 1
        code = [i for i in code if keep(i)]
    p.add_sched(code)
    if k.get('nextk', True): p(f"HINT {ar(KF(0, 0))}")
    if k.get('tail'): p(k['tail'][-1])

def body1(par, qk, pv, cin, name, nextk=True, dma=True, extra=None, tail=None, nwide=0, seed=0, show=False, taken=True, prevx=0, last=False):
    rnd = random.Random(seed)
    M, fl = [], []
    nq, npv = len(qk), len(pv)
    endc = {}
    quads = []; vlast = {}
    for kt in range(4):
        for i, qt in enumerate(snake(qk, kt + 1)):
            for z, ds in enumerate(snake(range(4), i)):
                d = vr(S_(qt, kt)); M.append(mfma(d, ar(KF(kt, ds)), vr(Q_(qt, ds)), vr(cin[qt](kt)) if z == 0 else d))
            endc[(qt, kt)] = len(M) - 1; quads.append((qt, kt))
    g_sum = len(M)
    SN3 = os.environ.get('SN3', '1') == '1'
    for qt in pv: M += rowsum(qt, par, snake(range(2), 1 if SN3 and qt == 3 else 0))
    g_pv = len(M)
    for dt in range(8):
        for i, qt in enumerate(snake(pv, dt + 1)):
            for ks in snake(range(2), i): vlast[(dt, ks)] = len(M); M.append(mfma(ar(O_(qt, dt)), ar(VF(dt, ks)), vr(P_(par, qt, ks)), ar(O_(qt, dt))))
    n = len(M)
    e2 = n - 1 if last else n - 2
    LAT = int(os.environ.get('LAT', '6'))
    if nq: softmax_quad(fl, 3, 3, par, 0, min(g_sum + (npv - 4 if SPS else 2 * npv - 5), endc[(3, 3)] - 4), 0)
    assert quads.pop() == (3, 3)
    for k, (qt, kt) in enumerate(quads):
        pr = 8 + (n - 14) * k // max(1, len(quads))
        softmax_quad(fl, qt, kt, par ^ 1, endc[(qt, kt)] + 4, e2, pr)
    koff1 = 16384 if par == 0 else 0
    koff2 = 0 if par == 0 else 16384
    voff = 16384 * par
    k1 = []
    if nq:
        for kt in (2, 3):
            for ds in range(4):
                hi = max(4 * nq * kt + ds - LAT, 4 * (kt - 2) + ds)
                f = F(rdK(kt, ds, koff1), 0, hi, pr=hi - 8); fl.append(f); k1.append(f)
    vrd = []
    for dt in range(8):
        if dt < 4 and not nq: continue
        for ks in range(2):
            g0 = g_pv + 2 * npv * dt + ks
            lo = 0 if dt < 4 else vlast[(dt - 4, ks)]
            hi = max(g0 - LAT, lo)
            f = F(rdV(dt, ks, voff), lo, hi, pr=hi - (10 if dt < 4 else 4)); fl.append(f); vrd.append(f)
    gb = g_pv + 2 * npv * 3 + (int(os.environ.get('GBO', '-12')) if name[:2] == 'l2' else 0)
    if nextk or dma:
        bar = F("s_waitcnt vmcnt(12)\ns_barrier", gb, gb, cls='B'); fl.append(bar)
        if os.environ.get('BS') and name[:2] == 'l2': bar.cls = 'S'; bar.pr = -9
    if nextk:
        aft = [bar]
        if par == 0:
            x = F(f"v_xor_b32 v{vKRD}, 0x8000, v{vKRD}", 0, gb - 1, after=k1); fl.append(x); aft.append(x)
        for kt in (0, 1):
            for ds in range(4):
                hi = min(e2, n + 4 * nq * kt + ds - LAT - 3)
                hi = min(hi, e2 - (7 - 4 * kt - ds))
                fl.append(F(rdK(kt, ds, koff2), gb + 1, hi, after=aft, pr=hi - 4))
    if par == 1 and nextk: fl.append(F(f"v_xor_b32 v{vVRD}, 0x8000, v{vVRD}", 0, n - 2, after=vrd))
    X = dict(n=n, g_sum=g_sum, g_pv=g_pv, endc=endc, gb=gb, pre=[], mid=[], end=[])
    if extra: extra(fl, X)
    if dma:
        ch = DmaChain(fl)
        kd = [([], f"buffer_load_dwordx4 v{vDMA}, {sr(SRD_KVL)}, s{sKOFF} offen offset:{q * 1024} {KVL_FLAGS} lds") for q in range(4)]
        kd[0] = ([f"s_add_u32 m0, s{sKM0}, {16384 * par}", f"s_add_u32 s{sKOFF}, s{sKOFF}, 0x8000"], kd[0][1])
        nx = sum(len(l) for l, _ in X['pre'] + X['mid'])
        bar.ins[0] = I(f"s_waitcnt vmcnt({12 + nx + prevx})")
        body1.nx = nx + sum(len(l) for l, _ in X['end'])
        sp = X.get('sp') or max(4, min(8, (gb - 4) // (4 + nx)))
        for l, aft in X['pre']: ch.add(l, 0, gb - 1 - 4 * sp, after=aft, sp=sp)
        r = ch.add(kd, 0, gb - 1, sp=sp)
        for l, aft in X['mid']: ch.add(l, 0, gb - 1, after=aft, sp=sp)
        bar.after.append(ch.lastg)
        prev = ch.lastg
        for x in X.get('aft', []): prev = F(x, 0, n - 24, after=[prev], cls='S'); fl.append(prev)
        if par == 1: fl.append(F(f"s_xor_b32 s{sKM0}, s{sKM0}, 0x8000", 0, n - 2, after=r[:1]))
        vd = [([], f"buffer_load_dwordx4 v{vDMA}, {sr(SRD_KVL)}, s{sVOFF} offen offset:{q * 1024} {KVL_FLAGS} lds") for q in range(4)]
        vd[0] = ([f"s_add_u32 m0, s{sVM0}, {16384 * (par ^ 1)}", f"s_add_u32 s{sVOFF}, s{sVOFF}, 0x8000"], vd[0][1])
        pre = vd[0][0]
        nx = sum(len(l) for l, _ in X['end'])
        sp = max(3, min(8, (n - 3 - gb) // (4 + nx)))
        r = ch.add(vd, 0, e2 - sp * nx, sp=sp)
        for f in r: f.after.append(bar)
        for l, aft in X['end']: ch.add(l, 0, n - 2, after=aft, sp=sp)
        if par == 0: fl.append(F(f"s_xor_b32 s{sVM0}, s{sVM0}, 0x8000", 0, n - 2, after=r[:1]))
    keep = set()
    nos = set()
    for kt in range(4):
        for ds in range(4): nos.add((4 * nq * kt + ds - 1) % n)
    for dt in range(8):
        for ks in range(2): nos.add(g_pv + 2 * npv * dt + ks - 1)
    nos.discard(gb)
    if tail:
        if taken: keep = {n - 1}
        prev = []
        for k, tx in enumerate(tail[:-1]):
            f = F(tx, n - 22, n - 2, after=prev + [x for x in fl if x.cls == 'S'], cls='S', lag=1); fl.append(f); prev = [f]
    if name[:2] == 'l4':
        for x in os.environ.get('KE4', '').split(','):
            if x: keep.add({'h': 0, 'i': 1, 'a': gb + 1, 'b': gb - 1, 'e': n - 2, 'z': n - 1}[x])
        if os.environ.get('SPR4'):
            for f in fl:
                if f.cls == 'E' and f.pr > 8: f.lo = max(f.lo, int(f.pr * float(os.environ['SPR4'])))
    if seed:
        for f in fl:
            if f.pr >= 0: f.pr += rnd.randint(-JIT, JIT)
        wide = set(rnd.sample([g for g in range(n - 1) if g != gb], nwide))
    else:
        wide = set((2 * k + 1) * n // (2 * nwide) for k in range(nwide)) if nwide else set()
        wide = set(w + 1 if w == gb else w for w in wide)
    return schedule(M, fl, keep_empty=keep, wide=wide, nos=nos, verbose=name if show else None, quiet=not show)
JIT = 6
U4 = int(os.environ.get('U4', '0')) and XH == 15
sHK, vPB = 82, 21
def loop_tail(lbl):
    return [f"s_sub_u32 s{sCNT}, s{sCNT}, 1", f"s_lshr_b32 s{sHK}, s{sHK}, 1", f"s_bitcmp1_b32 s{sHK}, 0", f"s_cselect_b32 s3, 0, s{sCNT}", "s_cmp_gt_u32 s3, 1", f"s_cbranch_scc1 {lbl}"]
def dispatch(p, name, c):
    p(f"""
    L_ev{name}:
    s_bitcmp1_b32 s{sHK}, 0
    s_cbranch_scc1 L_hook{name}
    L_last{name}:
    s_cmp_eq_u32 s{sCNT}, 0
    s_cbranch_scc1 L_after{name}
    """)
    for x in mask_update(c, lambda kt, r: c + 4 * kt + r): p(x)
    p(f"""
    s_branch L_loop{name}
    L_hook{name}:
    s_cmp_lt_u32 s{sHK}, 4
    s_cbranch_scc1 L_hook{name}_b
    s_cmp_gt_u32 s{sCNT}, 1
    buffer_store_dword v{vONE}, v{vATOM}, {sr(SRD_FL)}, s{sLF} offen offset:4 sc1
    s_cbranch_scc1 L_loop{name}
    s_branch L_last{name}
    L_hook{name}_b:
    s_cmp_eq_u32 s{sHK}, 1
    s_cbranch_scc1 L_hook{name}_chk
    s_cmp_gt_u32 s{sCNT}, 1
    {polls.load("late")}
    s_cbranch_scc1 L_loop{name}
    s_branch L_last{name}
    L_hook{name}_chk:
    s_waitcnt vmcnt(8)
    """)
    emit(p, polls.loop("late", f"hook{name}"))
    p(f"""
    L_hook{name}_ok:
    s_cmp_gt_u32 s{sCNT}, 1
    s_cbranch_scc1 L_loop{name}
    s_branch L_last{name}
    L_after{name}:
    """)

K0T = 224
PRE = {}
def gemm_end(fl, bar, vm):
    from prepf import Seq
    lastx = [e[0][1] for e in vm.order if f"{sr(SRD_X)}" in e[0][1].ins[-1].text or f"{sr(SRD_WQ)}" in e[0][1].ins[-1].text][-1]
    sq = Seq(fl)
    o = [f"v_and_b32 v14, 15, v{vLANE}", f"v_lshrrev_b32 v15, 4, v{vLANE}", "v_lshlrev_b32 v15, 2, v15", "v_sub_u32 v14, v14, v15",
         "v_lshrrev_b32 v15, 6, v0", "v_lshl_add_u32 v14, v15, 4, v14", "v_mov_b32 v15, 0"]
    o += [f"v_cmp_le_i32 {sr(MASK(kt, r), 2)}, {16 * kt + r}, v14" for kt in range(4) for r in range(4)]
    m = sq.add(o, 64 * 29 + 44, 64 * 31 - 10, after=[lastx], stag=1.5)
    for kt in range(4):
        for r in range(4):
            pass
    s_ = Seq(fl);
    for x in (f"s_mov_b32 s{sHK}, {0xe if U4 else 0x1a}", f"s_mov_b32 s{sVOFF}, 0x{2 * 32768 + 16384:x}", f"s_add_u32 s{sKM0}, s{sW4K}, 0x{WBASE:x}", f"s_add_u32 s{sVM0}, s{sW4K}, 0x8000",
              f"s_lshl_b32 s{sLF}, s{sH}, 3", f"s_add_u32 s{sLF}, s{sLF}, s{sJ}", f"s_lshl_b32 s{sLF}, s{sLF}, 7", f"s_add_u32 s{sLF}, s{sLF}, {KFLAG}"):
        s_.lag = 1; sc = s_.add([x], 64 * 30, 64 * 31 - 2)
    prev = m
    for r in range(4):
        a = F(f"s_cmp_eq_u32 s{sJ}, 0\ns_cselect_b64 s[0:1], {sr(MASK(0, r), 2)}, -1", 0, 64 * 31 + 10 + 3 * r, cls='S'); a.after2.append((prev, 2))
        prev = F(f"v_cndmask_b32 v{C0 + r}, v{vNEG}, v15, s[0:1]", 0, 64 * 31 + 11 + 3 * r, after=[a]); fl += [a, prev]
    for ds in range(4): fl.append(F(f"ds_read_b128 {ar(K0T + 4*ds)}, v{vKRD} offset:{ds * 1024}", 0, 2040, after=[bar[31]]))
    PRE['mul'] = {}
    for ct in ((0, 1, 4, 5) if QS else range(7)):
        for qt in range(4):
            for e in range(4):
                r = accQ(qt, ct) + e
                f = F(f"v_mul_f32 v{r}, s{sSC}, v{r}", gemm_stream.lastQ[accQ(qt, ct)] + 5, BIG, after=[sc], pr=3000 + 100 * qt + ct); f.opt = True
                fl.append(f); PRE['mul'][r] = f
sLF = 88

def attn_prologue(p, st):
    L = []
    late = list(gemm_stream.late)
    def qk(qt, kt, c, kf):
        for ds in range(4):
            d = vr(S_(qt, kt)); L.append(mfma(d, ar(kf(ds)), vr(Q_(qt, ds)), c if ds == 0 else d))
    def sm(qt, kt):
        s = S_(qt, kt); d = P_(0, qt, kt >> 1) + 2 * (kt & 1)
        for z in range(2): L.extend([f"v_exp_f32 v{s+2*z}, v{s+2*z}", f"v_exp_f32 v{s+2*z+1}, v{s+2*z+1}"])
        for z in range(2): L.append(f"v_cvt_pk_bf16_f32 v{d+z}, v{s+2*z}, v{s+2*z+1}")
    for kt in range(1, 4):
        for ds in range(4): L.append(rdK(kt, ds, 0))
    for pre, x in late: L += pre + [x]
    for qt in range(4):
        for k in range(16):
            s = 128 + 32 * qt + 2 * k
            for r in (s, s + 1):
                if (r not in PRE['mul'] and not QS) or (r in PRE['mul'] and PRE['mul'][r].gap is None): L.append(f"v_mul_f32 v{r}, s{sSC}, v{r}")
            L.append(f"v_cvt_pk_bf16_f32 v{128 + 16 * qt + k}, v{s}, v{s+1}")
        qk(qt, 0, vr(C0) if qt == 0 else '0', lambda ds: K0T + 4 * ds)
    for qt in range(4):
        s = S_(qt, 0); m, t = 14 + qt, 18 + qt
        L += [f"v_max3_f32 v{m}, v{s}, v{s+1}, v{s+2}", f"v_max_f32 v{m}, v{m}, v{s+3}"]
        for op in ("v_permlane32_swap_b32", "v_permlane16_swap_b32"): L += [f"v_mov_b32 v{t}, v{m}", f"{op} v{t}, v{m}", f"v_max_f32 v{m}, v{m}, v{t}"]
        if qt == 0:
            L.append(f"v_sub_f32 v{t}, 0, v{m}")
            L += [f"v_mov_b32 v{C0 + r}, v{t}" for r in range(4)]
            tail_ = [f"v_mov_b32 v{N0 + r}, v{C0}" for r in range(4)]
            for kt in range(1, 4):
                for r in range(4): L += [f"s_cmp_eq_u32 s{sJ}, 0", f"s_cselect_b64 s[{84 + 0}:{85}], {sr(MASK(kt, r), 2)}, -1".replace("s[84:85]", ("s[0:1]", "s[66:67]")[r & 1]), f"v_cndmask_b32 v{C0 + 4*kt + r}, v{vNEG}, v{t}, {('s[0:1]', 's[66:67]')[r & 1]}"]
        else:
            base, cnt = {1: (N1, 4), 2: (C2, 16), 3: (N3, 4)}[qt]
            L += [f"v_sub_f32 v{base + r}, 0, v{m}" for r in range(cnt)]
        for kt in range(1, 4): qk(qt, kt, vr(CIN[qt](kt)), lambda ds: KF(kt, ds))
        if qt == 1:
            L.append("s_waitcnt lgkmcnt(0)\ns_barrier ;! r=K1,V0")
            for pre, x in dma_KV(0, 3) + dma_KV(1, 2): L += pre + [x]
            L.append(f"s_mov_b32 s{sKOFF}, 0x{3 * 32768:x}")
    for ds in range(4): L.append(rdK(0, ds, 16384))
    for qt in range(4):
        L += [f"v_sub_f32 v{S_(qt,0)+r}, v{S_(qt,0)+r}, v{14+qt}" for r in range(4)]
        for kt in range(4):
            if (qt, kt) != (3, 3): sm(qt, kt)
    for ds in range(4): L.append(rdK(1, ds, 16384))
    L += tail_
    if SPS: L += [f"v_and_b32 v{vIDX}, 1, v{vLANE}", f"v_sub_u32 v{vIDX}, 0, v{vIDX}", f"v_and_b32 v{vIDX}, 0xaaaaaaaa, v{vIDX}", f"v_or_b32 v{vIDX}, 0x44444444, v{vIDX}"]
    p.add(dense(L, gsp=int(os.environ.get('PGSP', '160')), verbose="attn_pro"))

def attention(p, st, fz=None):
    p("L_attn:")
    attn_prologue(p, st)
    p(f"HINT {ar(KF(0, 0))}")
    st(p, '1a')
    A4 = [0, 1, 2, 3]
    W4, W2, TR = int(os.environ.get('W4', '0')), int(os.environ.get('W2', '11' if SPS else '7')), int(os.environ.get('TR', '300'))
    p(f"s_mov_b32 s{sCNT}, s{sJ}\ns_cmp_lt_u32 s{sCNT}, 2\ns_cbranch_scc1 L_last4")
    p.label("L_loop4", 6)
    if os.environ.get('STAMP') == 'L': p(f"s_memtime s[0:1]\ns_add_u32 m0, s{sCNT}, 32\ns_waitcnt lgkmcnt(0)\nv_writelane_b32 v23, s0, m0")
    body(p, 0, A4, A4, {**CIN, 0: lambda kt: N0}, "l4e", nwide=W4, extra=fz.ex4e)
    body(p, 1, A4, A4, CIN, "l4o", tail=loop_tail("L_loop4"), nwide=W4, prevx=body1.nx)
    dispatch(p, "4", C0)
    st(p, 'a')
    for x in mask_update(C0, lambda kt, r: N1): p(x)
    cin = dict(CIN); cin[1] = CINM
    if XH == 15:
        body(p, 0, [1, 2, 3], A4, cin, "b43", extra=fz.ex43, tail=[f"s_cmp_lg_u32 s{sJ}, 7", "s_cbranch_scc1 L_nomask2"])
        for x in mask_update(C2, lambda kt, r: C2 + 4 * kt + r): p(x)
        p("L_nomask2:")
    else: body(p, 0, [1, 2, 3], A4, cin, "b43", extra=fz.ex43)
    st(p, 'a')
    def ex32(fl, d):
        fz.ex32(fl, d)
        if C0F: ctx_fill(fl, d)
        for r in range(4): fl.append(F(f"v_mov_b32 v{N2 + r}, v{C2}", 0, d['n'] - 1))
    body(p, 1, [2, 3], [1, 2, 3], CIN, "b32", extra=ex32, prevx=body1.nx)
    st(p, 'a')
    if C0F: ctx_store(p, (0, 1), skip0=True)
    else: ctx_setup(p); ctx_store(p, (0, 1))
    st(p, '1a')
    p(f"s_xor_b32 s{sCNT}, s{sJ}, {XH}\ns_sub_u32 s{sCNT}, s{sCNT}, s{sJ}\n{f's_lshr_b32 s{sCNT}, s{sCNT}, 1' if U4 else f's_sub_u32 s{sCNT}, s{sCNT}, 1'}\ns_lshr_b32 s{sHK}, s{sHK}, 1\ns_bitcmp1_b32 s{sHK}, 0\ns_cselect_b32 s3, 0, s{sCNT}\ns_cmp_lt_u32 s3, 2\ns_cbranch_scc1 L_ev2")
    p.label("L_loop2", 6)
    if os.environ.get('STAMP') == 'L': p(f"s_memtime s[0:1]\ns_add_u32 m0, s{sCNT}, 16\ns_waitcnt lgkmcnt(0)\nv_writelane_b32 v23, s0, m0")
    if U4:
        body(p, 0, [2, 3], [2, 3], {**CIN, 2: lambda kt: N2}, "l2e", nwide=W2 - 1, tries=TR, last=True)
        body(p, 1, [2, 3], [2, 3], {**CIN, 2: lambda kt: N2}, "l2m", nwide=W2 - 1, tries=TR, last=True)
    body(p, 0, [2, 3], [2, 3], {**CIN, 2: lambda kt: N2}, "l2e", nwide=W2 - 1, tries=TR, last=True)
    body(p, 1, [2, 3], [2, 3], CIN, "l2o", tail=loop_tail("L_loop2"), nwide=W2 + 1, tries=TR)
    dispatch(p, "2", C2)
    st(p, '1ta')
    attn_tail(p, fz)

DEF3 = int(os.environ.get('DEF3', '0'))
def attn_tail(p, fz):
    L = []
    nd = " ; nodep"
    def sm(kt, pb):
        s = S_(3, kt); d = P_(pb, 3, kt >> 1) + 2 * (kt & 1)
        L.extend([f"v_exp_f32 v{s+r}, v{s+r}" for r in range(4)] + [f"v_cvt_pk_bf16_f32 v{d+z}, v{s+2*z}, v{s+2*z+1}" for z in range(2)])
    mk = mask_update(C0, lambda kt, r: N3)
    for kt in (2, 3):
        for ds in range(4): L.append(rdK(kt, ds, 16384) + nd)
    L += mk[:8]; sm(3, 0); L += mk[8:]
    for dt in range(4):
        for ks in range(2): L.append(rdV(dt, ks, 0) + nd)
    for kt in range(4):
        for ds in range(4):
            d = vr(S_(3, kt)); L.append(mfma(d, ar(KF(kt, ds)), vr(Q_(3, ds)), vr(CINM(kt)) if ds == 0 else d))
    L.append(f"HINT {ar(KF(3, 3))}\ns_waitcnt vmcnt(0)\ns_barrier")
    L += fz.tail_dma()
    for qt in (2, 3): L += rowsum(qt, 0)
    stage = fz.tail_stage()
    for dt in range(8):
        for qt in (2, 3):
            for ks in range(2): L.append(mfma(ar(O_(qt, dt)), ar(VF(dt, ks)), vr(P_(0, qt, ks)), ar(O_(qt, dt))))
        if dt < 4:
            for ks in range(2): L.append(rdV(dt + 4, ks, 0) + nd)
            sm(dt, 1)
    V2 = lambda dt, ks: KF(0, 0) + 8 * dt + 4 * ks
    for dt in range(8):
        for ks in range(2): L.append(f"ds_read_b128 {ar(V2(dt, ks))}, v{vVRD} offset:{16384 + dt * 2048 + ks * 1024}" + nd)
    L += rowsum(3, 1)
    for dt in range(8):
        for ks in range(2): L.append(mfma(ar(O_(3, dt)), ar(V2(dt, ks)), vr(P_(1, 3, ks)), ar(O_(3, dt))))
    q = Prog(); ctx_store(q, (2, 3), (40, 24, 40, 24, 128, 140, 152, 164) if DEF3 else (40, 24)); E = [i for i in q.items]
    if DEF3:
        k0 = [k for k, i in enumerate(E) if i.op == 'v_rcp_f32'][1] + 1
        attn_tail.rest = E[k0:-2]; E = E[:k0] + E[-2:]
    if os.environ.get('STG', 'a') == 'a': L += stage + E
    else: L += E + stage
    L += fz.tail_reads()
    code = dense(L, gsp=int(os.environ.get('TGSP', '70')), wsp=int(os.environ.get('WSP', '52')), dlat=int(os.environ.get('DLAT', '900')), verbose="attn_tail")
    X = os.environ.get('TX', '')
    if 'w' in X: code = [i for i in code if i.kind != 'dsw']
    if 'u' in X: code = [i for i in code if i.kind != 'dma' or 'offset:0 ' in i.text]
    if 's' in X: code = [i for i in code if i.kind != 'vst']
    if 'b' in X: code = [i for i in code if i.kind not in ('misc', 'wait')]
    p.add(code)
    p(f"s_or_b64 vcc, vcc, {sr(sBAD, 2)}\ns_cbranch_scc1 L_slow")

SRD_CTX = 4
sBAD = 70
LMAX = (127 + 60) << 23
def ctx_setup(p):
    p(f"s_lshl_b32 s3, s{sH}, 15\ns_lshl_b32 s31, s{sW}, 10\ns_add_u32 s3, s3, s31")
    srd(p, SRD_CTX, PTR['WS'], 3, WS_CTX, 15 * MB + 32768 - 3072)
C0F = int(os.environ.get('C0F', '0'))
def ctx_fill(fl, d):
    from prepf import Seq
    n = d['n']; q = Prog(); ctx_setup(q); q(f"s_lshl_b32 s87, s{sJ}, 20")
    import ssm
    sq = Seq(fl); sq.lag = 1
    for x in ssm.pairs(q): sq.lag = 1; sc = sq.add([x], 0, 30)
    rc = 22 if SPS else 20
    h = Seq(fl); o = [f"v_accvgpr_read_b32 v14, a{L_(0)}"]
    if SPS: o += [f"v_accvgpr_read_b32 v{rc}, a{L_(0)+1}", f"v_add_f32 v14, v14, v{rc}"]
    h.add(o + [None, f"v_rcp_f32 v{rc}, v14"], 0, 16)
    prev = h.last; G0, GS_ = int(os.environ.get('C0G', '6')), int(os.environ.get('C0S', '17'))
    c = []
    for s in range(C0F):
        t, pk = 224, 192 + 4 * s
        hi = min(n - 8, G0 + GS_ * (s + 1) + 6)
        r = [F(f"v_accvgpr_read_b32 v{t+e}, a{O_(0, 2*s) + e}", G0 + GS_ * s, hi - 3, after=c[e >> 1:(e >> 1) + 1]) for e in range(8)]
        m = [F(f"v_mul_f32 v{t+e}, v{t+e}, v{rc}", 0, hi - 1, after=[r[e], prev]) for e in range(8)]
        c = [F(f"v_cvt_pk_bf16_f32 v{pk+e}, v{t+2*e}, v{t+2*e+1}", 0, hi, after=m[2*e:2*e+2]) for e in range(4)]
        fl += r + m + c
        op = ([f"s_add_u32 s86, s87, 0x{s * 8192:x}"], f"buffer_store_dwordx4 {vr(pk)}, v{vL16}, {sr(SRD_CTX)}, s86 offen sc1 ;! w=CST")
        d['end'] += [([op], c + [sc])]
def ctx_store(p, qts, T=(192, 224), skip0=False):
    if not skip0: p(f"s_lshl_b32 s87, s{sJ}, 20")
    if qts[0] >= 2: p(f"s_xor_b32 s87, s87, 0x{XH * MB:x}")
    k = 0
    for i, qt in enumerate(qts):
        rc = 12 if i else (22 if SPS else 20)
        if not (skip0 and i == 0):
            p(f"v_accvgpr_read_b32 v{14+i}, a{L_(qt)}")
            if SPS: p(f"v_accvgpr_read_b32 v{rc}, a{L_(qt)+1}\nv_add_f32 v{14+i}, v{14+i}, v{rc}")
            p(f"v_rcp_f32 v{rc}, v{14+i}")
        for s in range(C0F if skip0 and i == 0 else 0, 4):
            t = T[k % len(T)]; k += 1
            for e in range(8): p(f"v_accvgpr_read_b32 v{t+e}, a{O_(qt, 2*s) + e}")
            for e in range(8): p(f"v_mul_f32 v{t+e}, v{t+e}, v{rc}")
            for e in range(4): p(f"v_cvt_pk_bf16_f32 v{t+8+e}, v{t+2*e}, v{t+2*e+1}")
            p(f"s_add_u32 s86, s87, 0x{s * 8192 + (qt & 1) * 4096:x}")
            p(f"buffer_store_dwordx4 {vr(t+8)}, v{vL16}, {sr(SRD_CTX)}, s86 offen sc1 ;! w=CST")
    p(f"v_add_f32 v22, v14, v15\nv_cmp_ngt_f32 vcc, 0x{LMAX:x}, v22")
    if qts[0] < 2: p(f"s_mov_b64 {sr(sBAD, 2)}, vcc")

def slow_path(p, redo):
    sQT, sNT, sT, sPASS, sO = 72, 73, 68, 69, 66
    S, P, CI, V, T = 96, 112, 24, 32, 192
    p(f"""
    L_slow:
    s_waitcnt vmcnt(0) lgkmcnt(0)
    s_mov_b32 s{sQT}, 0
    L_slow_qt:
    s_lshl_b32 s3, s{sJ}, 1
    s_xor_b32 s31, s3, {2 * XH}
    s_cmp_lt_u32 s{sQT}, 2
    s_cselect_b32 s{sNT}, s3, s31
    s_and_b32 s3, s{sQT}, 1
    s_add_u32 s{sNT}, s{sNT}, s3
    s_mov_b32 s{sPASS}, 0
    v_mov_b32 v14, v{vNEG}
    v_mov_b32 v15, 0
    """)
    for r in range(32): p(f"v_accvgpr_write_b32 a{r}, 0")
    for r in range(4): p(f"v_accvgpr_write_b32 a{L_(0)+r}, 0")
    p("L_slow_pass:")
    for r in range(16): p(f"v_mov_b32 v{CI+r}, v15")
    p(f"s_mov_b32 s{sT}, 0\nL_slow_tile:\ns_lshl_b32 s3, s{sT}, 15")
    for kt in range(4):
        for ds in range(4): p(f"buffer_load_dwordx4 {ar(KF(kt, ds))}, v{vL16}, {sr(SRD_KVL)}, s3 offen offset:{ds * 1024} sc1")
        p("s_add_u32 s3, s3, 4096")
    for q in range(16):
        p(f"buffer_load_dwordx4 {ar(V + 4*q)}, v{vL16}, {sr(SRD_KVL)}, s3 offen offset:{(q & 3) * 1024} sc1")
        if q & 3 == 3: p("s_add_u32 s3, s3, 4096")
    p(f"s_cmp_lg_u32 s{sT}, s{sNT}\ns_cbranch_scc1 L_slow_nomask")
    for x in mask_update(CI, lambda kt, r: CI + 4 * kt + r): p(x)
    p("L_slow_nomask:\ns_waitcnt vmcnt(0)")
    for kt in range(4):
        for ds in range(4): p(mfma(vr(S + 4*kt), ar(KF(kt, ds)), vr(128 + 4*ds), vr(CI + 4*kt) if ds == 0 else vr(S + 4*kt)))
    p(f"s_cmp_lg_u32 s{sPASS}, 0\ns_cbranch_scc1 L_slow_p2")
    for r in range(0, 16, 2): p(f"v_max3_f32 v14, v14, v{S+r}, v{S+r+1}")
    p("s_branch L_slow_next\nL_slow_p2:")
    for r in range(16): p(f"v_exp_f32 v{S+r}, v{S+r}")
    for r in range(8): p(f"v_cvt_pk_bf16_f32 v{P+r}, v{S+2*r}, v{S+2*r+1}")
    for ks in range(2): p(mfma(ar(L_(0)), ar(ONES), vr(P + 4*ks), ar(L_(0))))
    for dt in range(8):
        for ks in range(2): p(mfma(ar(4*dt), ar(V + 8*dt + 4*ks), vr(P + 4*ks), ar(4*dt)))
    p(f"""
    L_slow_next:
    s_add_u32 s{sT}, s{sT}, 1
    s_cmp_le_u32 s{sT}, s{sNT}
    s_cbranch_scc1 L_slow_tile
    s_cmp_lg_u32 s{sPASS}, 0
    s_cbranch_scc1 L_slow_store
    v_mov_b32 v16, v14
    v_permlane32_swap_b32 v16, v14
    v_max_f32 v14, v14, v16
    v_mov_b32 v16, v14
    v_permlane16_swap_b32 v16, v14
    v_max_f32 v14, v14, v16
    v_sub_f32 v15, 0, v14
    s_mov_b32 s{sPASS}, 1
    s_branch L_slow_pass
    L_slow_store:
    s_lshl_b32 s3, s{sJ}, 20
    s_xor_b32 s31, s3, 0x{XH * MB:x}
    s_cmp_lt_u32 s{sQT}, 2
    s_cselect_b32 s{sO}, s3, s31
    s_and_b32 s3, s{sQT}, 1
    s_lshl_b32 s3, s3, 12
    s_add_u32 s{sO}, s{sO}, s3
    v_accvgpr_read_b32 v16, a{L_(0)}
    v_rcp_f32 v16, v16
    """)
    for s in range(4):
        for e in range(8): p(f"v_accvgpr_read_b32 v{T+e}, a{8*s + e}")
        for e in range(8): p(f"v_mul_f32 v{T+e}, v{T+e}, v16")
        for e in range(4): p(f"v_cvt_pk_bf16_f32 v{T+8+e}, v{T+2*e}, v{T+2*e+1}")
        p(f"buffer_store_dwordx4 {vr(T+8)}, v{vL16}, {sr(SRD_CTX)}, s{sO} offen sc1\ns_add_u32 s{sO}, s{sO}, 8192")
    for r in range(48): p(f"v_mov_b32 v{128+r}, v{144+r}")
    p(f"""
    s_add_u32 s{sQT}, s{sQT}, 1
    s_cmp_lt_u32 s{sQT}, 4
    s_cbranch_scc1 L_slow_qt
    s_waitcnt vmcnt(0)
    """)
    redo(p)
    p(f"s_mov_b32 s{SRD_CTX+2}, 0\ns_branch L_slow_ret")
```

```python
from common import *
import math, os
sW, sH, sJ = 28, 29, 30
SRD_A, SRD_W0, SRD_W1, SRD_KVS, SRD_FL, SRD_KVL = 4, 8, 12, 16, 20, 24
SRD_DBG = 4
vP8 = 7
SRD_X, SRD_WQ = 56, 60
sCc, sXc, sWc = 32, 40, 48
sW8K, sW4K = 96, 97
vLANE, vDMA, vL16, vKRD, vVRD = 1, 2, 3, 4, 5
vATOM, vONE, vPOLL, vKST, vVST, vNEG = 8, 9, 10, 11, 12, 13
vCpat, vXpat, vWpat, vCrd, vXrd, vWrdKV, vWrdQ = 24, 26, 28, 30, 34, 38, 42
ASLOT = [0, 32768, 131072]
WBASE = 65536

def setup(p):
    if os.environ.get('STAMP'): p("s_memrealtime s[100:101]")
    p(f"""
    s_cmp_ge_u32 s2, 256
    s_cbranch_scc1 L_end
    s_load_dwordx16 s[64:79], s[0:1], 0
    s_load_dwordx16 s[80:95], s[0:1], 64
    """)
    if CT0 == 0: first_touch(p)
    p(f"""
    v_lshrrev_b32 v14, 6, v0
    v_and_b32 v{vLANE}, 63, v0
    v_readfirstlane_b32 s{sW}, v14
    """)
    if MAP:
        p(f"""
        s_and_b32 s3, s2, 6
        s_lshr_b32 s31, s2, 5
        s_lshl_b32 s{sH}, s3, 2
        s_add_u32 s{sH}, s{sH}, s31
        {'s_andn2_b32 s3, 1, s2' if MAP == 2 else 's_and_b32 s3, s2, 0x19'}
        s_bcnt1_i32_b32 s3, s3
        s_and_b32 s3, s3, 1
        s_lshr_b32 s{sJ}, s2, 2
        s_and_b32 s{sJ}, s{sJ}, 6
        s_or_b32 s{sJ}, s{sJ}, s3
        """)
    else:
        p(f"""
        s_and_b32 s3, s2, 7
        s_lshr_b32 s31, s2, 6
        s_lshl_b32 s{sH}, s3, 2
        s_add_u32 s{sH}, s{sH}, s31
        s_lshr_b32 s{sJ}, s2, 3
        s_and_b32 s{sJ}, s{sJ}, 7
        """)
    p(f"""
    s_lshl_b32 s{sW8K}, s{sW}, 13
    s_lshl_b32 s{sW4K}, s{sW}, 12
    """)
CT0 = int(os.environ.get('CT0', '0'))
def first_touch(p):
    for x in code_touch("pg0" if HOP else "code0", "codeend", 20, 127): emit(p, x.replace("s[0:1]", "s[52:53]").replace("s0", "s52").replace("s1", "s53").replace("s3", "s54"))
    p("L_code0:")

def code_touch(a, b, va, vd, n28=False):
    n = len(code_touch.used); code_touch.used.add(n)
    k = f"NL{28 if n28 else 32}_{a}__{b}_"
    return [*([f"s_lshr_b32 s3, s2, 6", "s_mul_i32 s3, s3, 7", f"s_add_u32 s3, s3, s{sJ}"] if n28 else [f"s_lshr_b32 s3, s2, 3"]), f"s_mul_i32 s3, s3, {k}PER",
            f"v_lshrrev_b32 v{va}, 3, v0", f"v_min_u32 v{va}, {k}PM1, v{va}", f"v_add_u32 v{va}, s3, v{va}", f"v_min_u32 v{va}, {k}MAX, v{va}", f"v_lshlrev_b32 v{va}, 7, v{va}",
            f"s_getpc_b64 s[0:1]\ns_nop 0 ;@L_pc{n}\ns_add_u32 s0, s0, L_{a}-L_pc{n}\ns_addc_u32 s1, s1, 0\nv_add_co_u32 v{va}, vcc, s0, v{va}\nv_mov_b32 v{va+1}, s1\nv_addc_co_u32 v{va+1}, vcc, 0, v{va+1}, vcc",
            f"global_load_dword v{vd}, v[{va}:{va+1}], off"]
code_touch.used = set()

def gemm_setup(p, st, w0, a0):
    rk, rq = int(os.environ.get('ROTK', '1')), int(os.environ.get('ROTQ', '1'))
    AF = int(os.environ.get('AFIRST', '0'))
    rot = f"""
    v_lshrrev_b32 v16, 4, v{vLANE}
    s_lshr_b32 s99, s2, {5 if MAP else 6}
    s_lshr_b32 s31, s2, 3
    s_add_u32 s99, s99, s31
    s_and_b32 s55, s99, {rk}
    """
    def wpart(first):
        p(f"""
        v_and_b32 v17, 15, v{vLANE}
        v_lshlrev_b32 v18, 1, v16
        v_xor_b32 v18, v17, v18
        v_lshlrev_b32 v18, 4, v18
        v_lshl_add_u32 v{vWpat}, v16, 13, v18
        s_lshl_b32 s98, s55, 19
        v_xor_b32 v{vWpat}, s98, v{vWpat}
        v_xor_b32 v{vWpat+1}, 0x80, v{vWpat}
        s_lshl_b32 s3, s{sH}, 8
        s_lshl_b32 s31, s{sW}, 17
        s_add_u32 s3, s3, s31
        """)
        for q in range(4): p(f"s_mov_b32 s{sWc+q}, 0x{q*4*8192 - q*1024:x}")
        q = Prog(); srd(q, SRD_W0, PTR['WUK'], 3, 0, (448+15)*8192 + 256)
        p.add(q.items[2:]); p(w0[0][0][0])
        if first: p("s_waitcnt lgkmcnt(0)")
        p.add(q.items[:2])
        if first: st(p)
        for _, x in w0: p(x)
    def apart(first):
        p(f"""
        v_lshrrev_b32 v14, 3, v{vLANE}
        v_and_b32 v15, 7, v{vLANE}
        v_xor_b32 v18, v15, v16
        v_lshlrev_b32 v18, 4, v18
        v_lshl_add_u32 v{vCpat}, v14, 10, v18
        s_lshl_b32 s98, s55, 7
        v_xor_b32 v{vCpat}, s98, v{vCpat}
        v_xor_b32 v{vCpat+1}, 64, v{vCpat}
        {f"v_lshl_add_u32 v{vXpat}, v14, 11, v18" if first else ""}
        s_lshl_b32 s98, s{sJ}, 17
        s_lshr_b32 s31, s{sW}, 1
        s_lshl_b32 s31, s31, 16
        s_add_u32 s98, s98, s31
        s_and_b32 s31, s{sW}, 1
        s_lshl_b32 s31, s31, 20
        s_add_u32 s98, s98, s31
        """)
        q = Prog(); srd(q, SRD_A, PTR['CKV'], 98, 0, 64*1024)
        if first:
            p.add(q.items[2:])
            for y in a0[0][0]: p(y)
            p(f"s_mov_b32 s{sCc}, 0\ns_waitcnt lgkmcnt(0)"); p.add(q.items[:2]); st(p)
        else: p.add(q.items)
        for k, (pre, x) in enumerate(a0):
            if not (first and k == 0):
                for y in pre: p(y)
                p(f"s_mov_b32 s{sCc+k}, 0x{k*8192 - (k&3)*1024:x}")
            p(x)
    p(rot)
    for k, part in enumerate((apart, wpart) if AF else (wpart, apart)):
        part(k == 0)
        if os.environ.get('PST2'): st(p, 'g')
        if CT0 == k + 1: first_touch(p)
    srd(p, SRD_W1, PTR['WUV'], 3, 0, (448+15)*8192 + 256)
    p(f"""
    {"" if AF else f"v_lshl_add_u32 v{vXpat}, v14, 11, v18"}
    s_and_b32 s99, s99, {rq & 1 if rq > 7 else rq}
    {f's_xor_b32 s98, s2, s{sJ};s_and_b32 s98, s98, 7;s_lshl_b32 s98, s98, 1;s_or_b32 s99, s99, s98'.replace(';', chr(10)) if rq > 7 else ''}
    s_lshl_b32 s98, s99, 7
    v_xor_b32 v{vXpat}, s98, v{vXpat}
    v_xor_b32 v{vXpat+1}, 64, v{vXpat}
    s_xor_b32 s99, s99, s55
    s_xor_b32 s99, s99, 7
    s_lshl_b32 s99, s99, 19
    v_lshlrev_b32 v{vL16}, 4, v{vLANE}
    v_add_u32 v{vDMA}, s{sW4K}, v{vL16}
    """)

def start_touch(p, st0, what):
    if 'w' in what: p(f"""
    s_and_b32 s98, s{sJ}, 3
    s_lshl_b32 s98, s98, 2
    s_add_u32 s98, s98, s{sW}
    s_lshl_b32 s98, s98, 4
    v_lshrrev_b32 v100, 2, v{vLANE}
    v_add_u32 v100, s98, v100
    v_lshrrev_b32 v101, 1, v100
    v_lshlrev_b32 v101, 13, v101
    v_and_b32 v100, 1, v100
    v_lshl_add_u32 v101, v100, 7, v101
    s_lshl_b32 s98, s{sH}, 8
    s_add_u32 s98, s98, 0x{st0 << 19:x}
    v_add_u32 v101, s98, v101
    s_cmp_ge_u32 s{sJ}, 4
    s_cselect_b64 s[0:1], {sr(PTR['WUV'], 2)}, {sr(PTR['WUK'], 2)}
    global_load_dword v102, v101, s[0:1]
    """)
    if 'c' in what: p(f"""
    s_lshr_b32 s98, s2, 3
    s_lshl_b32 s98, s98, 2
    s_add_u32 s98, s98, s{sW}
    s_lshl_b32 s98, s98, 4
    v_lshrrev_b32 v100, 2, v{vLANE}
    v_add_u32 v100, s98, v100
    v_lshlrev_b32 v101, 10, v100
    v_bfe_u32 v100, v{vLANE}, 1, 1
    v_lshl_add_u32 v101, v100, 7, v101
    v_add_u32 v101, 0x{st0 << 7:x}, v101
    global_load_dword v103, v101, {sr(PTR['CKV'], 2)}
    """)

def page_touch(p, what):
    def ld(ptr): p(f"global_load_dword v102, v101, {sr(PTR[ptr], 2)}")
    if 'k' in what:
        p("s_lshr_b32 s98, s2, 4\ns_lshl_b32 s98, s98, 18\nv_mov_b32 v101, s98"); ld('BK'); ld('BV')
    if 'x' in what:
        p(f"v_and_b32 v101, 1, v{vLANE}\nv_lshlrev_b32 v101, 21, v101"); ld('X')
    if 'q' in what:
        p(f"v_and_b32 v101, 3, v{vLANE}\nv_lshlrev_b32 v101, 21, v101"); ld('WQ')
    if 'o' in what:
        p(f"v_and_b32 v101, 3, v{vLANE}\nv_lshlrev_b32 v101, 21, v101"); ld('WO')
    if 's' in what:
        p(f"v_and_b32 v101, 1, v{vLANE}\nv_lshlrev_b32 v101, 21, v101"); ld('SSMK')
    if 'w' in what:
        p(f"v_min_u32 v101, 39, v{vLANE}\nv_lshlrev_b32 v101, 21, v101"); ld('WS')
    if 'f' in what:
        p(f"v_mov_b32 v101, 0x{WS_FLAG:x}"); ld('WS')

def gemm_setup2(p):
    p(f"""
    v_lshrrev_b32 v18, 1, v17
    v_xor_b32 v18, v16, v18
    v_lshlrev_b32 v18, 4, v18
    v_lshl_add_u32 v18, v17, 7, v18
    s_and_b32 s31, s{sW}, 1
    s_lshl_b32 s31, s31, 14
    v_add_u32 v{vCrd}, s31, v18
    v_xor_b32 v{vCrd+1}, 64, v{vCrd}
    v_add_u32 v{vCrd+2}, 0x20000, v{vCrd}
    v_add_u32 v{vCrd+3}, 0x20000, v{vCrd+1}
    v_add_u32 v{vXrd}, s{sW8K}, v18
    v_xor_b32 v{vXrd+1}, 64, v{vXrd}
    v_add_u32 v{vXrd+2}, 0x20000, v{vXrd}
    v_add_u32 v{vXrd+3}, 0x20000, v{vXrd+1}
    """)
    p(f"""
    v_bfe_u32 v18, v{vLANE}, 2, 2
    v_and_b32 v19, 1, v16
    v_lshl_add_u32 v19, v19, 2, v18
    v_lshl_add_u32 v18, v16, 3, v18
    v_lshlrev_b32 v18, 8, v18
    v_lshl_add_u32 v18, v19, 5, v18
    v_and_b32 v19, 3, v{vLANE}
    v_lshl_add_u32 v18, v19, 3, v18
    v_add_u32 v{vWrdQ}, 0x{WBASE:x}, v18
    """)
    for ct in range(1, 8): p(f"v_xor_b32 v{vWrdQ+ct}, 0x{ct << 5:x}, v{vWrdQ}")
    p(f"s_lshr_b32 s31, s{sW}, 1\ns_lshl_b32 s31, s31, 7")
    for ct in range(4): p(f"v_xor_b32 v{vWrdKV+ct}, s31, v{vWrdQ+ct}")

def gemm_setup3(p):
    p(f"s_lshl_b32 s3, s{sH}, 8\ns_lshl_b32 s31, s{sW}, 17\ns_add_u32 s3, s3, s31")
    srd(p, SRD_WQ, PTR['WQ'], 3, 0, (960+15)*8192 + 256)
    srd(p, SRD_X, PTR['X'], None, 0, 2048*2048)
    p(f"""
    s_lshl_b32 s3, s{sJ}, 18
    s_lshl_b32 s31, s{sW}, 15
    s_add_u32 s{sXc}, s3, s31
    s_xor_b32 s3, s3, 0x{XH << 18:x}
    s_add_u32 s{sXc+4}, s3, s31
    """)
    for q in (1, 2, 3):
        d = (q >> 1) * 64 * 2048 + (q & 1) * 8 * 2048 - q * 1024
        p(f"s_add_u32 s{sXc+q}, s{sXc}, 0x{d:x}\ns_add_u32 s{sXc+4+q}, s{sXc+4}, 0x{d:x}")
    p(f"s_lshl_b32 s3, s{sH}, 20")
    srd(p, SRD_KVS, PTR['WS'], 3, WS_KV, MB)
    p(f"s_xor_b32 s31, s{sJ}, {XH}\ns_add_u32 s31, s31, 1\ns_lshl_b32 s31, s31, 16")
    srd(p, SRD_KVL, PTR['WS'], 3, WS_KV, "s31")
    srd(p, SRD_FL, PTR['WS'], None, WS_FLAG, 2 * KFLAG)
    p(f"""
    s_lshl_b32 s3, s{sJ}, 16
    s_and_b32 s31, s{sW}, 1
    s_lshl_b32 s31, s31, 15
    s_add_u32 s3, s3, s31
    s_lshr_b32 s31, s{sW}, 1
    s_lshl_b32 s98, s31, 11
    s_add_u32 s98, s98, s3
    v_add_u32 v{vKST}, s98, v{vL16}
    s_lshl_b32 s98, s31, 13
    s_add_u32 s98, s98, s3
    s_add_u32 s98, s98, 0x4000
    v_add_u32 v{vVST}, s98, v{vL16}
    v_lshlrev_b32 v{vATOM}, 20, v0
    s_lshl_b32 s3, s{sH}, 10
    s_add_u32 s3, s3, {KFLAG}
    v_lshlrev_b32 v{vP8}, 7, v15
    v_add_u32 v{vP8}, s3, v{vP8}
    v_mov_b32 v{vONE}, 1
    v_mov_b32 v{vNEG}, 0xff800000
    v_add_u32 v{vKRD}, 0x{WBASE:x}, v{vL16}
    v_mov_b32 v{vVRD}, v{vL16}
    """)

XF = os.environ.get('XF', '')
def dma_A(a):
    out = []
    slot = ASLOT[a % 3]
    s, pat, cst = (SRD_A, vCpat, sCc) if a < 8 else (SRD_X, vXpat, sXc)
    for q in range(8):
        pre = []
        if q == 0 and a not in (0, 8):
            st_ = a if a < 8 else a - 8
            pre += [f"v_xor_b32 v{pat+z}, 0x{(st_ ^ (st_ - 1)) * 128:x}, v{pat+z}" for z in range(2)]
        if q % 4 == 0: pre += [f"s_add_u32 m0, s{sW8K}, 0x{slot + (q >> 2) * 4096:x}"]
        out.append((pre, f"buffer_load_dwordx4 v{pat + (q & 1)}, {sr(s)}, s{cst+q} offen offset:{(q & 3) * 1024} {XF} lds ;! w=A{a}"))
    return out
def dma_W(g):
    out = []
    s = SRD_WQ if g >= 16 else (SRD_W1 if g & 1 else SRD_W0)
    for q in range(4):
        pre = []
        if q == 0:
            if g == 16: pre += [f"v_xor_b32 v{vWpat+z}, s99, v{vWpat+z}" for z in range(2)]
            elif g >= 16 or (g >= 2 and g % 2 == 0):
                st_ = g - 16 if g >= 16 else g // 2
                pre += [f"v_xor_b32 v{vWpat+z}, 0x{(st_ ^ (st_ - 1)) << 19:x}, v{vWpat+z}" for z in range(2)]
            pre += [f"s_add_u32 m0, s{sW4K}, 0x{WBASE + (g % 4) * 16384:x}"]
        out.append((pre, f"buffer_load_dwordx4 v{vWpat + (q >> 1)}, {sr(s)}, s{sWc+q} offen offset:{q * 1024} {XF} lds ;! w=W{g}"))
    return out
sKOFF, sVOFF, sKM0, sVM0, sCNT = 98, 99, 100, 101, 31
import os
STF = os.environ.get('STF', 'sc1').replace('+', ' ')
KVL_FLAGS = os.environ.get('KVF', 'sc1')
def dma_KV(isv, t):
    out = []
    for q in range(4):
        pre = []
        if q == 0:
            pre += [f"s_mov_b32 s{sKOFF}, 0x{t * 32768 + isv * 16384:x}",
                    f"s_add_u32 m0, s{sW4K}, 0x{(0 if isv else WBASE) + (t % 4) * 16384:x}"]
        out.append((pre, f"buffer_load_dwordx4 v{vDMA}, {sr(SRD_KVL)}, s{sKOFF} offen offset:{q * 1024} {KVL_FLAGS} lds"))
    return out
def emit_dma(p, lst):
    for pre, d in lst:
        for x in pre: p(x)
        p(d)

accK = lambda ct, i: 128 + 16 * i + 4 * ct
accV = lambda ct, i: 16 * i + 4 * ct
accQ = lambda qt, ct: 128 + 32 * qt + 4 * ct
cF = lambda i, ks: 128 + 8 * i + 4 * ks
wF = lambda n, ks: 192 + 8 * (n % 4) + 4 * ks
xF = lambda s, qt, ks: (224 if s % 2 == 0 else 160) + 8 * qt + 4 * ks
def rdA(dst, a, idx, ks):
    slot = ASLOT[a % 3]; base = vCrd if a < 8 else vXrd
    v = base + ks + (2 if slot >= 65536 else 0)
    tok = f" ;! w=RA{a}" + (f" r=A{a}" if a >= 8 else "")
    return f"ds_read_b128 {ar(dst)}, v{v} offset:{(slot & 65535) + idx * 2048}{tok}"
def rdW(n, g, ct, ks, hf):
    v = (vWrdKV if g < 16 else vWrdQ) + ct
    return f"ds_read_b64_tr_b16 {ar(wF(n, ks) + 2 * hf, 2)}, v{v} offset:{(g % 4) * 16384 + ks * 8192 + hf * 1024}"

SP = int(os.environ.get('SP', '4'))
class DmaChain:
    def __init__(self, fl): self.fl = fl; self.last = None; self.lastg = None
    def add(self, lst, lo, hi, after=(), sp=None):
        n = len(lst); res = []; sp = sp or SP
        for k, (pre, d) in enumerate(lst):
            h = hi - sp * (n - 1 - k)
            for x in pre:
                f = F(x, lo, h - 1, after=([self.last] if self.last else []) + list(after), lag=1, cls='V' if x.startswith('v_') else 'S', pr=-1); self.fl.append(f); self.last = f
            f = F(d, lo, h, after=([self.last] if self.last else []) + list(after), lag=1); self.fl.append(f); self.last = f; res.append(f)
            f.pr = -1
            if self.lastg: f.after2.append((self.lastg, sp))
            self.lastg = f
        return res

QS = int(os.environ.get('QS', '1'))
sSC = 83
HOP = int(os.environ.get('HOP', '2'))
HS = [[int(y) for y in x.split(':')] for x in os.environ.get('HS', '0:8,167:15,10188:20').split(',')]
def hop_session(k):
    t = "s_mov_b64 exec, 0\n" if HOP == 2 else ""
    for w in range(3): t += f"s_cmp_eq_u32 s{sW}, {w}\ns_cbranch_scc1 L_hr{k} ;hop{k}_{w}\n"
    t += f"s_branch L_hr{k} ;hop{k}_3\ns_nop 0 ;@L_hr{k}"
    return t + ("\ns_mov_b64 exec, -1" if HOP == 2 else "")
class Polls:
    def __init__(self): self.t = {}; self.ool = []
    def load(self, name):
        srd_, voff, soff, off, _, _, v = self.t[name]
        return f"buffer_load_dword v{v}, {voff}, {sr(srd_)}, {soff} {'offen ' if voff != 'off' else ''}offset:{off} sc1"
    def loop(self, name, tag=None):
        _, _, _, _, val, op, v = self.t[name]; tag = tag or name
        return f"""s_mov_b32 s0, 0
        s_nop 0 ;@L_{tag}_loop
        v_cmp_{op}_u32 vcc, {val}, v{v}
        s_cbranch_vccz L_{tag}_ok
        {f"s_sleep {os.environ['SLP']}" if os.environ.get('SLP') else ''}
        {self.load(name)}
        s_add_u32 s0, s0, 1
        s_cmp_lt_u32 s0, 0x200000
        s_waitcnt vmcnt(0)
        s_cbranch_scc1 L_{tag}_loop"""
    def inline(self, name): return f"HINT v{self.t[name][6]}\n" + self.loop(name) + f"\ns_nop 0 ;@L_{name}_ok"
    def check(self, name, tag=''):
        _, _, _, _, val, op, v = self.t[name]; t = name + tag
        self.ool.append(f"s_nop 0 ;@L_{t}_wait\n" + self.loop(name, t) + f"\ns_branch L_{t}_ok")
        return f"v_cmp_{op}_u32 vcc, {val}, v{v}\ns_cbranch_vccnz L_{t}_wait\ns_nop 0 ;@L_{t}_ok"
polls = Polls()
polls.t.update(clr=(SRD_DBG, "off", f"s{sKM0}", 0, 0, 'eq', vPOLL), kv=(SRD_FL, f"v{vP8}", "0", 0, 1, 'ne', vPOLL), late=(SRD_FL, f"v{vP8}", "0", 4, 1, 'ne', 21))
def emit(p, txt): p.add_sched([I(x) for x in txt.split('\n') if x.strip()])

def touch_fill(fl, vm, g, a, b, va, vd, st):
    ct = [x.replace('s3', f's{st}') for x in code_touch(a, b, va, vd)]
    prev = None
    for x in ct[:-2]:
        f = F(x, g - 30, g - 8, after=[prev] if prev else [], pr=-1); fl.append(f); prev = f
    prev = F(ct[-2], g - 30, g - 2, after=[prev], cls='B', pr=-1); fl.append(prev)
    vm.add([([], ct[-1])], g, g + 40, 2, after=[prev], margin=10)
def label_fill(fl, g, name): fl.append(F(f"s_nop 0 ;@L_{name}", g, g, cls='S'))

class VM:
    def __init__(self, fl): self.fl = fl; self.groups = []
    def add(self, lst, lo, key, cost, after=(), margin=40, stream=None, prio=1):
        ops = []
        for pre, d in lst:
            ops.append(([F(x, cls='V' if x.startswith('v_') else 'S', after=list(after), pr=-1) for x in pre], F(d, after=list(after), pr=-1)))
        self.groups.append(dict(ops=ops, lo=lo, key=key, cost=cost, margin=margin, stream=stream, n=len(self.groups), prio=prio))
        return [o[1] for o in ops]
    def emit(self, t0=0, minsp=3, show=False):
        G = list(self.groups); order = []; t = t0
        while G:
            head = [g for g in G if g['stream'] is None or not any(h['stream'] == g['stream'] and h['n'] < g['n'] for h in G)]
            av = [g for g in head if g['lo'] <= t] or [min(head, key=lambda g: g['lo'])]
            due = [g for g in av if g['key'] - g['margin'] - minsp * len(g['ops']) <= t]
            g = min(due, key=lambda g: (g['key'], g['n'])) if due and any(g['prio'] != 1 for g in av) else min(av, key=lambda g: (g['prio'], g['key'], g['n'])); G.remove(g)
            t = max(t, g['lo'])
            t = max(g['lo'], min(t, g['key'] - g['margin'] - minsp * len(g['ops'])))
            for o in g['ops']: order.append([o, t, g]); t += g['cost']
        latest = BIG
        for e in reversed(order):
            latest = min(latest - minsp, e[2]['key'] - e[2]['margin']); e.append(latest)
        last = lastg = None
        for (pre, f), t, g, lat in order:
            tt = max(g['lo'], min(int(t), lat))
            for x in pre:
                x.lo = max(g['lo'], tt - len(pre) - 2); x.hi = tt + 10
                if last: x.after.append(last)
                self.fl.append(x); last = x
            f.lo = tt; f.hi = tt + 12; f.must = g['key']
            if last: f.after.append(last)
            if lastg: f.after2.append((lastg, minsp))
            self.fl.append(f); last = lastg = f
        self.order = order
    def check(self, show=False):
        if show: print('; vm:', ' '.join(f"{e[0][1].gap}" for e in self.order))
        bad = [(e[0][1].gap, e[2]['key'], e[0][1].ins[-1].text) for e in self.order if e[0][1].gap >= e[2]['key']]
        assert not bad, bad[:3]
        print('; vm min lead', min((e[2]['key'] - e[0][1].gap, e[0][1].gap, e[0][1].ins[-1].text[:60]) for e in self.order))

def gemm_stream(p, st, hook=None, endhook=None):
    M, fl = [], []
    wt = []
    FW = int(os.environ.get('FW', '0'))
    cuse = {}; lastK = {}; firstQ = {}; gemm_stream.lastQ = {}
    for u in range(16):
        s, isv = u >> 1, u & 1
        def kvpass(n, ct, rows):
            for pos, i in enumerate(rows):
                for z, ks in enumerate(snake(range(2), pos)):
                    first = s == 0 and z == 0
                    cuse.setdefault((s, i, ks), []).append(len(M))
                    if not isv: d = vr(accK(ct, i)); lastK[accK(ct, i)] = len(M); M.append(mfma(d, ar(wF(n, ks)), ar(cF(i, ks)), '0' if first else d))
                    else: d = ar(accV(ct, i)); M.append(mfma(d, ar(cF(i, ks)), ar(wF(n, ks)), '0' if first else d))
        if u == 0 and FW:
            for ct in range(4): wt.append((0, ct, 8 * ct, 32 + 8 * ct + 7))
            for rows in ((0, 1, 4, 5), (2, 3, 6, 7)):
                for ct in range(4): kvpass(ct, ct, snake(rows, ct))
            continue
        for ct in range(4):
            n = len(wt); wt.append((u, ct, len(M), len(M) + 15))
            kvpass(n, ct, snake(range(8), ct + s if os.environ.get('SN4', '1') == '1' else (ct if not isv else (0, 1, 1, 0)[ct])))
    for s in range(16):
        for ct in range(8):
            n = len(wt); wt.append((16 + s, ct, len(M), len(M) + 7))
            for pos, qt in enumerate(snake(range(4), ct)):
                for z, ks in enumerate(snake(range(2), pos)):
                    firstQ.setdefault(accQ(qt, ct), len(M)); gemm_stream.lastQ[accQ(qt, ct)] = len(M)
                    d = vr(accQ(qt, ct)); M.append(mfma(d, ar(wF(n, ks)), ar(xF(s, qt, ks)), '0' if s == 0 and z == 0 else d))
    bar = {}
    BP = 40
    SIG_U = int(os.environ.get('SIG', '25'))
    NPRE_W = int(os.environ.get('NPREW', '3')); KOFF = int(os.environ.get('KOFF', '30'))
    for u in range(32):
        need = [f"W{u+1}"] if u < 31 else ["K0"]
        if u < 15 and u & 1: need.append(f"A{(u + 1) >> 1}")
        if u < 16 and not u & 1: need.append(f"RA{u >> 1}")
        if u >= 29: need.append(f"RA{u - 8}")
        if u == SIG_U: need += ["ST"] + (["PREP"] if hook else [])
        bar[u] = F(f"s_barrier", 64 * u + BP, 64 * u + BP, cls='B'); fl.append(bar[u])
    for n in range(2, len(wt)):
        g, ct, g0, g1 = wt[n]
        lo = wt[n - 4][3] + 1 if n >= 4 else 0
        aft = [bar[g - 1]] if g >= 1 else []
        lo = max(lo, g0 - 26)
        for k, (ks, hf) in enumerate([(0, 0), (0, 1), (1, 0), (1, 1)]):
            fl.append(F(rdW(n, g, ct, ks, hf), lo, g0 - 10 + k, after=aft))
    if FW:
        g0 = int(os.environ.get('FWB', '20'))
        b0 = F("s_barrier ;! r=A0", g0, g0, cls='B'); fl.append(b0)
        for k, i in enumerate((2, 3, 6, 7)):
            for ks in range(2): fl.append(F(rdA(cF(i, ks), 0, i, ks), g0 + 1, g0 + 2 + 2 * k + ks, after=[b0], pr=-2))
    for s in range(1, 8):
        for i in range(8):
            for ks in range(2):
                fl.append(F(rdA(cF(i, ks), s, i, ks), cuse[(s - 1, i, ks)][-1], cuse[(s, i, ks)][0] - 8, after=[bar[2 * s - 1]]))
    xr = {}
    for s in range(16):
        base = 64 * (15 + s)
        xr[s] = []
        for qt in range(4):
            for ks in range(2):
                k = 2 * qt + ks
                f = F(rdA(xF(s, qt, ks), 8 + s, qt, ks), base + 2 + 4 * k, base + 24 + 4 * k); fl.append(f); xr[s].append(f)
    kcv = {}
    ksc = F(f"s_mov_b32 s{sSC}, {f32hex(QSCALE)}", 64 * 12, 64 * 13); fl.append(ksc)
    for i in range(8):
        for a in range(2):
            f_ = 2 * i + a; kcv[f_] = []
            for h in range(2):
                src = accK(2 * a + h, i)
                for z in range(2):
                    lastw = lastK[src]; ml = []
                    if QS and a == 1:
                        ml = [F(f"v_mul_f32 v{r}, s{sSC}, v{r}", lastw + 6, firstQ[src] - 3, after=[ksc]) for r in (src + 2 * z, src + 2 * z + 1)]; fl += ml
                    f = F(f"v_cvt_pk_bf16_f32 v{64 + 4 * f_ + 2 * h + z}, v{src + 2 * z}, v{src + 2 * z + 1}", lastw + 6, firstQ[src] - 1, after=ml)
                    fl.append(f); kcv[f_].append(f)
                    for x in ml + [f]: x.slack = int(os.environ.get('KSL', '40'))
    vm = VM(fl)
    E = lambda k, d: float(os.environ.get(k, d))
    CH, CM, CS = E('CH', '7'), E('CM', '4.7'), E('CS', '6')
    bg = lambda u: 64 * u + BP
    S0, S1 = 64 * 15 + 24, bg(SIG_U) - 50
    skey = lambda z: int(S0 + 60 + (S1 - S0 - 20) * (z + 1) / 16)
    SAL = int(E('SAL', '0'))
    if SAL:
        SN_, SOFF = int(E('SALN', '2')), int(E('SOFF', '30'))
        skey = lambda z: 64 * (SAL + z // SN_) + SOFF + 4 * (z % SN_) + 60
        KOFF = -20
    def kop(f_, tok):
        i, a = f_ >> 1, f_ & 1
        return ([f"s_mov_b32 s3, 0x{(i >> 2) * 0x80000 + (i & 3) * 4096:x}"], f"buffer_store_dwordx4 {vr(64 + 4 * f_)}, v{vKST}, {sr(SRD_KVS)}, s3 offen offset:{a * 1024} {STF} ;! w={tok}")
    def vop(f_, tok):
        ct, b = (f_ >> 1) & 3, (f_ >> 3) * 2 + (f_ & 1)
        return ([f"s_mov_b32 s3, 0x{(b >> 1) * 0x80000 + (ct >> 1) * 4096:x}"], f"buffer_store_dwordx4 {vr(64 + 4 * (f_ & 7))}, v{vVST}, {sr(SRD_KVS)}, s3 offen offset:{(ct & 1) * 2048 + (b & 1) * 1024} {STF} ;! w={tok}")
    free = {}
    for f_ in range(8): free[f_] = vm.add([kop(f_, 'ST')], skey(f_) - 60, skey(f_) + KOFF, CS, after=kcv[f_], stream='st', margin=36 if SAL else KOFF + 20)[0]
    tmp_last = {}; zero_after = {}; vcv = {}
    kk = 0; hi_prev = 0
    for f_ in (0, 1, 2, 3, 8, 4, 9, 5, 10, 6, 11, 7, 12, 13, 14, 15):
        ct, b = (f_ >> 1) & 3, (f_ >> 3) * 2 + (f_ & 1)
        cv = []
        if f_ < 8: hi = skey(8 + f_) - 64; lo = max(1030, hi - int(E('VLO', '200')))
        else: lo = 1030; hi = skey(f_ + 4) - 80 if f_ < 12 else skey(15) + 30 * (f_ - 11)
        if SAL: hi = max(hi, hi_prev + 10)
        hi_prev = hi
        for h in range(2):
            for z in range(2):
                k = 4 * f_ + 2 * h + z; t = 50 + 2 * (kk % 7); kk += 1; src = accV(ct, 2 * b + h) + 2 * z
                aft = [tmp_last[t]] if t in tmp_last else []
                r0 = F(f"v_accvgpr_read_b32 v{t}, a{src}", lo, hi - 4, after=aft); r1 = F(f"v_accvgpr_read_b32 v{t+1}, a{src+1}", lo, hi - 4, after=aft)
                c = F(f"v_cvt_pk_bf16_f32 v{64 + (k & 31)}, v{t}, v{t+1}", lo, hi - 2, after=[r0, r1, free[f_ & 7]]); tmp_last[t] = c
                fl.extend([r0, r1, c]); cv.append(c); zero_after[src] = r0; zero_after[src + 1] = r1
        vcv[f_] = cv
        if f_ < 8: free[f_] = vm.add([vop(f_, 'ST')], skey(8 + f_) - 60, skey(8 + f_) + KOFF, CS, after=cv, stream='st', margin=36 if SAL else KOFF + 20)[0]
    late = []
    for m in range(4): late += [(vop(8 + m, 'SL'), vcv[8 + m]), (vop(12 + m, 'SL'), vcv[12 + m]), (kop(8 + m, 'SL'), []), (kop(12 + m, 'SL'), [])]
    NL, L0, CL = int(E('NL', '8')), int(E('L0', '1850')), E('CL', '16')
    for z in range(NL): vm.add([late[z][0]], int(L0 + z * (2040 - L0) / NL), 2090 + z, 3, after=late[z][1], stream='sl', margin=45)
    gemm_stream.late = [x[0] for x in late[NL:]]
    WP0, WP1 = [int(x) for x in os.environ.get('WPR', '99,99').split(',')]
    for g in range(NPRE_W, 32):
        vm.add(dma_W(g), bg(g - 3) + 1 if g >= 4 else 0, bg(g - 1), CH if g < int(E('NCW', '16')) else CM, after=[bar[g - 3]] if g >= 4 else [], stream='W', prio=0 if WP0 <= g <= WP1 else 1)
    for a in range(1, 24):
        lst = dma_A(a)
        if a < 3: lo, aft = 0, []
        elif a < 11: lo, aft = bg(2 * (a - 3)) + 1, [bar[2 * (a - 3)]]
        else:
            lo, aft = 64 * (a + 4) + 62, xr[a - 11]
            lst[0] = (lst[0][0], lst[0][1] + f" r=RA{a - 3}")
        key = bg(2 * a - 1) if a < 8 else 64 * (7 + a) + 2
        for h in range(2): vm.add(lst[4*h:4*h+4], lo, key, CH if a < int(E('NCA', '8')) else CM, after=aft, stream='A')
    lastA = [g for g in vm.groups if 'w=A7' in g['ops'][-1][1].ins[-1].text][-1]['ops'][-1][1]
    vm.add([([f"s_mov_b32 s{SRD_DBG}, s{PTR['DBG']}", f"s_mov_b32 s{SRD_DBG+1}, s{PTR['DBG']+1}", f"s_mov_b32 s{SRD_DBG+2}, 256", f"s_lshl_b32 s{sKM0}, s{sH}, 2"], polls.load("clr"))], 64 * 13, 64 * 15, 1, after=[lastA], margin=60)
    clr = F(polls.check("clr"), 64 * 15 + 1, 64 * 15 + 1, cls='B'); fl.append(clr)
    vm.add([([f"s_lshl_b32 s3, s{sH}, 3", f"s_add_u32 s3, s3, s{sJ}", "s_lshl_b32 s3, s3, 7", f"s_add_u32 s3, s3, {KFLAG}"], f"buffer_store_dword v{vONE}, v{vATOM}, {sr(SRD_FL)}, s3 offen sc1")], bg(SIG_U) + 1, bg(SIG_U) + 30, 1, after=[bar[SIG_U], clr], margin=20)
    vm.add([([], polls.load("kv"))], bg(29) - 70, bg(29) - 2, 1, margin=50)
    kvc = F(polls.check("kv"), bg(29) - 2, bg(29) - 2, cls='B'); fl.append(kvc)
    vm.add([([f"s_add_u32 s3, s{sKM0}, 128", f"s_cmp_eq_u32 s{sJ}, 7\ns_cselect_b32 s3, s3, 0x1000"], f"buffer_store_dword v{vONE}, v{vATOM}, {sr(SRD_DBG)}, s3 offen sc1")], bg(29) + 1, 64 * 30 - 1, 1, after=[kvc], margin=4)
    vm.add(dma_KV(0, 0), bg(29) + 1, bg(31), CM, after=[bar[29]], stream='KV')
    vm.add(dma_KV(1, 0), bg(29) + 1, 2060, CM, after=[bar[29]], stream='KV')
    vm.add(dma_KV(0, 1), bg(30) + 1, 2061, CM, after=[bar[30]], stream='KV')
    vm.add(dma_KV(0, 2) + dma_KV(1, 1), bg(31) + 1, 2100, 3, after=[bar[31]], stream='KV')
    vm.kcv = kcv; vm.bar = bar
    q = Prog(); gemm_setup3(q); hook(-1, q, None, None)
    prev = None; k = 0
    its = q.items
    while k < len(its):
        t = its[k].text
        if k + 1 < len(its) and its[k + 1].op == 's_addc_u32': t += "\n" + its[k + 1].text; k += 1
        f = F(t, 0, int(E('SU3', '73')), pr=-1, cls='V' if t.startswith('v_') else 'S')
        if prev: f.after2.append((prev, 0))
        fl.append(f); prev = f; k += 1
    vm.setup = prev
    if hook: hook(0, vm, fl, CH)
    for k, (g, a, b) in enumerate(((int(E('CTA', '0')), 'gq0', 'gq1'), (int(E('CTB', '0')), 'gq1', 'attn'))):
        if g: touch_fill(fl, vm, g, a, b, 18 if k == 0 else 20, 17, 31)
    if E('CT2', '0'): touch_fill(fl, vm, int(E('CT2', '0')), 'attn', 'after2', 20, 17, 31)
    if HOP:
        for k in range(1, len(HS)):
            if HS[k][0] < 10000: fl.append(F(hop_session(k), HS[k][0], HS[k][0], cls='B'))
    label_fill(fl, 64 * 14, 'gq0'); label_fill(fl, 64 * 23, 'gq1')
    vm.emit(t0=int(E('T0', '20')))
    zr = F(f"v_mov_b32 v19, 0x30000", 64 * 17, 64 * 18); fl.append(zr)
    for r in range(0, 144, 4):
        fl.append(F(f"ds_read_b128 {ar(r)}, v19", 64 * 18, 64 * 31 - 20, after=[zr] + [zero_after[x] for x in range(r, r + 4) if x < 128], pr=5000))
    if E('ON4', '1'):
        prev = []
        for k, x in enumerate((f"v_and_b32 v14, {2 if E('SPS', '1') else 3}, v{vLANE}", "v_min_u32 v14, 1, v14", "v_subrev_u32 v14, 1, v14", "v_and_b32 v14, 0x3f803f80, v14")):
            prev = [F(x, 64 * 19, 64 * 21 - 8 + k, after=prev)]; fl += prev
    else: fl.append(F(f"v_mov_b32 v14, 0x3f803f80", 64 * 20, 64 * 21 - 2))
    for r in range(144, 148): fl.append(F(f"v_accvgpr_write_b32 a{r}, v14", 64 * 21, 64 * 29))
    if endhook: endhook(fl, bar, vm)
    a0 = dma_A(0)
    if FW: a0 = [(pre, x.replace("w=A0", "w=A0a") if k < 4 else x) for k, (pre, x) in enumerate(a0)]
    gemm_setup(p, st, dma_W(0), a0)
    gemm_setup2(p)
    if os.environ.get('PST2'): st(p, 'g')
    STT, WPRE = os.environ.get('STT', ''), int(E('WPRE', '0'))
    PGT = os.environ.get('PGT', '')
    if PGT and not os.environ.get('PGL'): page_touch(p, PGT)
    if STT[:1] == 'a': start_touch(p, int(E('STS', '2')), STT[1:])
    if WPRE:
        for g in range(1, NPRE_W): emit_dma(p, dma_W(g))
        if STT[:1] == 'b': start_touch(p, int(E('STS', '2')), STT[1:])
    if HOP:
        p.note('''While the first tiles are on their way every wave visits the first instruction line of a few code pages (branches only, no memory
        instruction on that path): sequential instruction prefetch stops at page ends.''')
        emit(p, hop_session(0).rsplit('\n', 2 if HOP == 2 else 1)[0])
        p.label("L_pg0", 12)
        p("L_hr0:")
        if HOP == 2: p("s_mov_b64 exec, -1")
    if not WPRE:
        for g in range(1, NPRE_W): emit_dma(p, dma_W(g))
        if STT[:1] == 'b': start_touch(p, int(E('STS', '2')), STT[1:])
    if PGT and os.environ.get('PGL'): page_touch(p, PGT)
    if E('PST', '0'):
        for n_ in (20, 19, 16, 12, 8): p(f"s_waitcnt vmcnt({n_})"); st(p, 'g')
    p("s_barrier ;! r=A0a,W0" if FW else "s_barrier ;! r=A0,W0")
    st(p)
    for u in [int(x) for x in os.environ.get('GU', '4,8,12,16,20,24,28').split(',')]: st.fill(fl, 64 * u - 1, '1g' if u == 16 else 'g')
    for ks in range(2):
        for hf in range(2): p(rdW(0, 0, 0, ks, hf))
    NF = 8 if FW else int(E('NF', '4'))
    for i in ((0, 1, 4, 5) if FW else range(8)):
        for ks in snake(range(2), i):
            if i < NF: p(rdA(cF(i, ks), 0, i, ks))
            else: fl.append(F(rdA(cF(i, ks), 0, i, ks), 0, cuse[(0, i, ks)][0] - 2 * NF, pr=-8))
    for k, (ks, hf) in enumerate(((0, 0), (0, 1), (1, 0), (1, 1))):
        if NF == 8: p(rdW(1, 0, 1, ks, hf))
        else: fl.append(F(rdW(1, 0, 1, ks, hf), 0, 16 - 2 * NF + k, pr=-7))
    code = schedule(M, fl, verbose="gemm", rate=E('RATE', '19') or None)
    vm.check(os.environ.get('V'))
    for ins in code:
        if os.environ.get('NOST') and 'w=ST' in ins.text: ins = I("s_nop 0 ;! w=ST")
        AB_ = os.environ.get('ABL', '')
        if 'w' in AB_ and (ins.kind == 'dsw'): ins = I("s_nop 0")
        if 'p' in AB_ and ins.op == 'ds_bpermute_b32': ins = I("s_nop 0")
        if 'v' in AB_ and ins.kind == 'valu' and ins.op.startswith(('v_fmac', 'v_and', 'v_lshlrev')) and any(104 <= int(r[1:]) < 123 for r in ins.writes): continue
        if 'u' in AB_ and ins.op == 'buffer_load_dwordx2': ins = I("s_nop 0")
        if 'g' in AB_ and ins.kind == 'vld' and 's77 offen' in ins.text: ins = I("s_nop 0")
        if 't' in AB_ and ins.op == 'global_load_dword': ins = I("s_nop 0")
        if 's' in AB_ and ins.op == 'buffer_store_dwordx4' and 'PREP' in ins.text: ins = I("s_nop 0")
        if os.environ.get('NODMA') and ins.kind == 'dma': ins = I("s_nop 0 ;!" + ins.text.split(';!')[1])
        if os.environ.get('NOBAR') and ins.op == 's_barrier': ins = I("s_nop 0 ;!" + ins.text.split(';!')[1])
        p.add_sched([ins])

QSCALE = math.log2(math.e) / math.sqrt(128.0)
import struct
def f32hex(x): return "0x%08x" % struct.unpack("<I", struct.pack("<f", x))[0]
```
